```python
import torch

def _softmax(x, axis=-1):
    return torch.softmax(x, dim=axis)
def _gelu(x):
    return torch.nn.functional.gelu(x, approximate="tanh")
def _silu(x):
    return torch.nn.functional.silu(x)
def _sigmoid(x):
    return torch.sigmoid(x)
def _layernorm(x, axis=-1, eps=1e-5):
    m = x.mean(dim=axis, keepdim=True)
    v = x.var(dim=axis, keepdim=True, unbiased=False)
    return (x - m) / torch.sqrt(v + eps)
def _scatter_add(tgt, idx, src, axis=0):
    return tgt.clone().index_add_(axis, idx, src)
def _segment_sum(src, seg, n):
    out = torch.zeros((n,) + src.shape[1:], dtype=src.dtype)
    return out.index_add_(0, seg, src)
def _pad(x, pw):
    flat = tuple(v for pair in reversed(pw) for v in pair)
    return torch.nn.functional.pad(x, flat)

kernel_name = 'interleave_layers__linear_attn_block__glu_gated_bilinear__prompt'

def setup_inputs():

    _w = (lambda a: (lambda t: t.to(torch.bfloat16) if t.is_floating_point() else t)(torch.as_tensor(a)))
    def _A_setup():
        B, S, D = 1, 2048, 512
        return {
            "x": _w((lambda *s: torch.randn(*s, dtype=torch.bfloat16) * 0.05)(B, S, D)),
            "wqkv": _w((lambda *s: torch.randn(*s, dtype=torch.bfloat16) * 0.05)(D, 3 * D)),
            "wo": _w((lambda *s: torch.randn(*s, dtype=torch.bfloat16) * 0.05)(D, D)),
        }
    _A_in = _A_setup()

    def _B_setup():
        B, S, D, F = 1, 2048, 512, 1792
        return {
            "x": _w((lambda *s: torch.randn(*s, dtype=torch.bfloat16) * 0.05)(B, S, D)),
            "w_gate": _w((lambda *s: torch.randn(*s, dtype=torch.bfloat16) * 0.4)(D, F) * (D ** -0.5)),
            "w_up": _w((lambda *s: torch.randn(*s, dtype=torch.bfloat16) * 0.4)(D, F) * (D ** -0.5)),
            "w_down": _w((lambda *s: torch.randn(*s, dtype=torch.bfloat16) * 0.4)(F, D) * (F ** -0.5)),
        }
    _B_in = _B_setup()

    return {
        "A_x": _A_in["x"],
        "A_wqkv": _A_in["wqkv"],
        "A_wo": _A_in["wo"],
        "B_x": _B_in["x"],
        "B_w_gate": _B_in["w_gate"],
        "B_w_up": _B_in["w_up"],
        "B_w_down": _B_in["w_down"],
    }

def reference(A_x, A_wqkv, A_wo, B_x, B_w_gate, B_w_up, B_w_down):
    def _A_ref(x, wqkv, wo):
        B, S, D = x.shape
        H = 32; Dh = D // H
        qkv = (lambda x, *d: x.permute(*d))((x @ wqkv).reshape(B, S, 3, H, Dh), 2, 0, 3, 1, 4)
        q, k, v = qkv[0], qkv[1], qkv[2]
        phi = lambda t: torch.where(t > 0, t + 1, torch.exp(t)) + 1e-6
        pq, pk = phi(q), phi(k)
        kv = torch.einsum("bhsd,bhse->bhde", pk, v)
        z = torch.einsum("bhsd->bhd", pk)
        num = torch.einsum("bhqd,bhde->bhqe", pq, kv)
        den = torch.einsum("bhqd,bhd->bhq", pq, z)[..., None] + 1e-6
        o = num / den
        return (lambda x, *d: x.permute(*d))(o, 0, 2, 1, 3).reshape(B, S, D) @ wo

    def _B_ref(x, w_gate, w_up, w_down):
        g = torch.einsum("bsd,df->bsf", x, w_gate)
        u = torch.einsum("bsd,df->bsf", x, w_up)
        h = g * u
        return torch.einsum("bsf,fd->bsd", h, w_down)

    x = A_x
    x = x + _A_ref(_layernorm(x, axis=-1), A_wqkv, A_wo)
    x = x + _B_ref(_layernorm(x, axis=-1), B_w_gate, B_w_up, B_w_down)
    x = x + _A_ref(_layernorm(x, axis=-1), A_wqkv, A_wo)
    x = x + _B_ref(_layernorm(x, axis=-1), B_w_gate, B_w_up, B_w_down)
    return x
```

```python
import re

REG_RE = re.compile(r"\b([vas])\[(\d+):(\d+)\]|\b([vas])(\d+)\b|\b(vcc|exec|m0|scc)\b")


def regs_of(tok):
    out = []
    for m in REG_RE.finditer(tok):
        if m.group(1):
            for i in range(int(m.group(2)), int(m.group(3)) + 1):
                out.append((m.group(1), i))
        elif m.group(4):
            out.append((m.group(4), int(m.group(5))))
        else:
            out.append((m.group(6), 0))
    return out


def R(kind, lo, n=1):
    if n == 1:
        return f"{kind}{lo}"
    return f"{kind}[{lo}:{lo + n - 1}]"


def V(lo, n=1):
    return R("v", lo, n)


def A(lo, n=1):
    return R("a", lo, n)


def S(lo, n=1):
    return R("s", lo, n)


TRANS = ("v_exp_f32", "v_log_f32", "v_rcp_f32", "v_rsq_f32", "v_sqrt_f32", "v_sin_f32", "v_cos_f32")


class Inst:
    __slots__ = ("op", "ops", "mods", "reads", "writes", "cls", "tag", "raw", "srcc", "srcab", "passes", "wide", "comment")

    def __init__(self, op, ops=(), mods="", tag=None, raw=False, comment=""):
        self.op = op
        self.ops = list(ops)
        self.mods = mods
        self.tag = tag
        self.raw = raw
        self.comment = comment
        self.srcc = set()
        self.srcab = set()
        self.passes = 0
        self.wide = set()
        self.classify()

    def text(self):
        if self.cls == "label":
            return f"{self.op}:"
        s = "  " + self.op
        if self.ops:
            s += " " + ", ".join(str(o) for o in self.ops)
        if self.mods:
            s += " " + self.mods
        if self.comment:
            s += "   ; " + self.comment
        return s

    def classify(self):
        op = self.op
        ops = [str(o) for o in self.ops]
        rd, wr = set(), set()
        allr = lambda lst: set(r for t in lst for r in regs_of(t))
        if op.startswith("L_") or op.endswith("_kernel"):
            self.cls = "label"
        elif op.startswith("v_mfma"):
            self.cls = "mfma"
            wr = allr(ops[:1])
            self.srcab = allr(ops[1:3])
            self.srcc = allr(ops[3:4])
            rd = self.srcab | self.srcc
            self.passes = 8 if "32x32x16" in op else 4
        elif op.startswith("ds_read") or op.startswith("ds_bpermute") or op.startswith("ds_swizzle"):
            self.cls = "dsr"
            wr = allr(ops[:1])
            rd = allr(ops[1:])
        elif op.startswith("ds_"):
            self.cls = "dsw"
            rd = allr(ops)
        elif op.startswith("buffer_load") or op.startswith("global_load"):
            if " lds" in (" " + self.mods) or "_lds_" in op:
                self.cls = "dma"
                rd = allr(ops) | {("m0", 0)}
            else:
                self.cls = "vload"
                wr = allr(ops[:1])
                rd = allr(ops[1:])
        elif op.startswith("buffer_store") or op.startswith("global_store"):
            self.cls = "vstore"
            rd = allr(ops)
            if "x4" in op or "x3" in op:
                self.wide = allr(ops[:1]) if op.startswith("buffer") else allr(ops[1:2])
        elif op.startswith("buffer_atomic") or op.startswith("global_atomic"):
            self.cls = "vstore"
            rd = allr(ops)
            assert "sc0" not in self.mods, "returning atomics only in raw code"
        elif op.startswith("s_load") or op.startswith("s_memtime") or op.startswith("s_memrealtime"):
            self.cls = "smem"
            wr = allr(ops[:1])
            rd = allr(ops[1:])
        elif op in ("s_waitcnt", "s_barrier", "s_nop", "s_sleep", "s_setprio", "s_endpgm", "s_branch") or op.startswith("s_cbranch"):
            self.cls = "ctl"
            if op.startswith("s_cbranch_scc"):
                rd = {("scc", 0)}
            if op.startswith("s_cbranch_vcc"):
                rd = {("vcc", 0)}
            if op.startswith("s_cbranch_exec"):
                rd = {("exec", 0)}
        elif op.startswith("s_cmp"):
            self.cls = "salu"
            rd = allr(ops)
            wr = {("scc", 0)}
        elif op.startswith("s_"):
            self.cls = "salu"
            wr = allr(ops[:1]) | {("scc", 0)}
            rd = allr(ops[1:])
            if op in ("s_addk_i32", "s_mulk_i32"):
                rd |= allr(ops[:1])
            if "saveexec" in op:
                wr |= {("exec", 0)}
                rd |= {("exec", 0)}
            if op.startswith("s_cselect") or op.startswith("s_addc"):
                rd |= {("scc", 0)}
        elif op.startswith("v_"):
            self.cls = "valu"
            if op.startswith("v_permlane"):
                wr = allr(ops)
                rd = allr(ops)
            else:
                wr = allr(ops[:1])
                rd = allr(ops[1:])
                if op.startswith("v_fmac") or op.startswith("v_dot2c"):
                    rd |= wr
                if op.startswith("v_add_co") or op.startswith("v_sub_co") or op.startswith("v_addc_co"):
                    wr |= allr(ops[1:2])
                if op.startswith("v_cndmask") and len(ops) == 3:
                    rd |= {("vcc", 0)}
        else:
            raise ValueError("unknown op " + op)
        self.reads, self.writes = rd, wr


class Prog:
    def __init__(self, name):
        self.name = name
        self.ins = []
        self.nlabel = 0

    def I(self, op, *ops, mods="", tag=None, raw=False, comment=""):
        i = Inst(op, ops, mods, tag, raw, comment)
        self.ins.append(i)
        return i

    def label(self, base="L"):
        self.nlabel += 1
        return f"L_{self.name}_{base}_{self.nlabel}"

    def place(self, lab):
        self.ins.append(Inst(lab))

    def wait_tag(self, tag):
        self.ins.append(("wait_tag", tag))

    def wait_vm_all(self):
        self.ins.append(("wait_vm", 0))

    def wait_lgkm_all(self):
        self.ins.append(("wait_lgkm", 0))

    def comment(self, s):
        self.ins.append(("comment", s))

    def capture(self):
        self._saved = getattr(self, "_saved", [])
        self._saved.append(self.ins)
        self.ins = []

    def end_capture(self):
        got = self.ins
        self.ins = self._saved.pop()
        return got

    def extend(self, lst):
        self.ins.extend(lst)

    def finalize(self):
        out = []
        vmq = []
        lgq = []
        smem_pending = set()

        def emit_wait(vm=None, lg=None):
            parts = []
            if vm is not None:
                parts.append(f"vmcnt({min(vm, 63)})")
            if lg is not None:
                parts.append(f"lgkmcnt({min(lg, 15)})")
            push(Inst("s_waitcnt", [" ".join(parts)]))

        def states_since(pred, limit):
            d = 0
            for i in reversed(out):
                if isinstance(i, str):
                    continue
                if i.cls == "label":
                    continue
                if pred(i):
                    return d
                d += (int(i.ops[0]) + 1) if i.op == "s_nop" else 1
                if d >= limit:
                    return None
            return None

        def push(i):
            out.append(i)

        def need_states(i):
            need = 0
            rd, wr = i.reads, i.writes
            vr = {r for r in rd if r[0] in "va"}
            vw = {r for r in wr if r[0] in "va"}
            sr = {r for r in rd if r[0] in ("s", "vcc")}

            def chk(pred, n):
                nonlocal need
                d = states_since(pred, n)
                if d is not None:
                    need = max(need, n - d)

            if i.cls == "mfma":
                chk(lambda p: p.cls == "valu" and (p.writes & vr), 2)
                for ps, n_ov, n_ab in ((8, 10, 12), (4, 6, 8)):
                    chk(lambda p: p.cls == "mfma" and p.passes == ps and (p.writes & i.srcab), n_ab)
                    chk(lambda p: p.cls == "mfma" and p.passes == ps and (p.writes & i.srcc)
                        and not (p.writes == i.srcc and p.passes == i.passes), n_ov)
                    chk(lambda p: p.cls == "mfma" and p.passes == ps and (p.writes & vw)
                        and not (p.writes == i.srcc and p.passes == i.passes), n_ov)
                chk(lambda p: p.cls == "valu" and ("exec", 0) in p.writes, 4)
            if i.cls in ("valu", "vload", "vstore", "dma", "dsr", "dsw"):
                for ps, n in ((8, 12), (4, 8)):
                    chk(lambda p: p.cls == "mfma" and p.passes == ps and (p.writes & (vr | vw)), n)
            if i.cls == "valu":
                for ps, n in ((8, 7), (4, 3)):
                    chk(lambda p: p.cls == "mfma" and p.passes == ps and (p.srcc & vw), n)
                if i.op not in TRANS:
                    chk(lambda p: p.op in TRANS and (p.writes & vr), 1)
                chk(lambda p: p.cls == "valu" and (p.writes & sr), 2)
                if i.op.startswith("v_readfirstlane") or i.op.startswith("v_readlane"):
                    chk(lambda p: p.cls == "valu" and (p.writes & vr), 1)
                    chk(lambda p: p.cls == "valu" and (p.writes & sr), 4)
                if i.op.startswith("v_permlane") or "dpp" in i.op or "row_" in i.mods:
                    chk(lambda p: p.cls == "valu" and (p.writes & vr), 2)
                chk(lambda p: p.wide and (p.wide & vw), 2)
                chk(lambda p: p.op.startswith("v_dot") and p.op != i.op and (p.writes & (vr | vw)), 3)
                if i.op.startswith("v_dot"):
                    ab = set(r for t in i.ops[1:3] for r in regs_of(str(t)))
                    chk(lambda p: p.op == i.op and (p.writes & ab), 3)
            else:
                chk(lambda p: p.op.startswith("v_dot") and (p.writes & (vr | vw)), 3)
                chk(lambda p: p.op in TRANS and (p.writes & vr), 1)
            if i.cls in ("vload", "dsr"):
                chk(lambda p: p.wide and (p.wide & vw), 1)
                for ps, n in ((8, 7), (4, 3)):
                    chk(lambda p: p.cls == "mfma" and p.passes == ps and (p.srcc & vw), n)
            if i.cls in ("vload", "vstore", "dma"):
                chk(lambda p: p.cls == "valu" and (p.writes & sr), 5)
            if i.cls == "dma":
                chk(lambda p: p.cls == "salu" and ("m0", 0) in p.writes, 1)
            if i.cls in ("salu", "ctl", "smem"):
                chk(lambda p: p.cls == "valu" and (p.writes & sr), 4)
            return need

        for i in self.ins:
            if isinstance(i, tuple):
                k, arg = i
                if k == "comment":
                    out.append("  ; ---- " + arg)
                elif k == "wait_tag":
                    idx = max([n for n, e in enumerate(vmq) if e[1] == arg], default=None)
                    if idx is not None:
                        emit_wait(vm=len(vmq) - 1 - idx)
                        del vmq[: idx + 1]
                elif k == "wait_vm":
                    emit_wait(vm=0)
                    vmq.clear()
                elif k == "wait_lgkm":
                    if lgq or smem_pending:
                        emit_wait(lg=0)
                        lgq.clear()
                        smem_pending.clear()
                continue
            if i.cls == "label":
                out.append(i)
                continue
            if not i.raw:
                touched = i.reads | i.writes
                vm = lg = None
                idx = max([n for n, e in enumerate(vmq) if e[0] & touched], default=None)
                if idx is not None:
                    vm = len(vmq) - 1 - idx
                    del vmq[: idx + 1]
                if smem_pending & touched:
                    lg = 0
                    lgq.clear()
                    smem_pending.clear()
                else:
                    idx = max([n for n, e in enumerate(lgq) if e & touched], default=None)
                    if idx is not None:
                        lg = len(lgq) - 1 - idx
                        if smem_pending:
                            lg = 0
                            lgq.clear()
                            smem_pending.clear()
                        else:
                            del lgq[: idx + 1]
                if vm is not None or lg is not None:
                    emit_wait(vm, lg)
            n = need_states(i)
            while n > 0:
                k = min(n, 16)
                push(Inst("s_nop", [k - 1]))
                n -= k
            push(i)
            if not i.raw:
                if i.cls == "vload":
                    vmq.append((set(i.writes), i.tag))
                elif i.cls in ("vstore", "dma"):
                    vmq.append((set(), i.tag))
                elif i.cls == "dsr":
                    lgq.append(set(i.writes))
                elif i.cls == "dsw":
                    lgq.append(set())
                elif i.cls == "smem":
                    smem_pending |= set(i.writes)
                elif i.op == "s_waitcnt":
                    t = str(i.ops[0])
                    m = re.search(r"vmcnt\((\d+)\)", t)
                    if m:
                        n = int(m.group(1))
                        del vmq[: max(0, len(vmq) - n)]
                    m = re.search(r"lgkmcnt\((\d+)\)", t)
                    if m:
                        n = int(m.group(1))
                        if n == 0:
                            smem_pending.clear()
                        del lgq[: max(0, len(lgq) - n)]
        self.out = out
        return "\n".join(x if isinstance(x, str) else x.text() for x in out)


def interleave(main, fill, per=None, start=0):
    slots = [n for n, i in enumerate(main) if isinstance(i, Inst) and i.cls == "mfma"]
    slots = slots[start:]
    out = []
    if not slots:
        return list(main) + list(fill)
    f = list(fill)
    total = len(f)
    done = 0
    sset = {s: k for k, s in enumerate(slots)}
    for n, i in enumerate(main):
        out.append(i)
        if n in sset:
            k = sset[n]
            if per is None:
                want = (total * (k + 1) + len(slots) - 1) // len(slots)
            else:
                want = min(total, per * (k + 1))
            while done < want:
                out.append(f[done])
                done += 1
    out.extend(f[done:])
    return out
```

```python
KB = 1024
MB = 1024 * 1024
FR = 1024

off = 0
def alloc(n, align=4096):
    global off
    off = (off + align - 1) // align * align
    o = off
    off += n
    return o

CNT = alloc(256 * 256)
WQKV_P = alloc(16 * 3 * 32 * FR)
CSQ = alloc(16 * 3 * FR)
WO_P = alloc(16 * 32 * FR)
WGU_P = alloc(112 * 32 * FR)
CSG = alloc(112 * FR)
WD_P = alloc(16 * 112 * FR)
X = [alloc(64 * 32 * FR) for _ in range(4)]
ST = [alloc(64 * 16 * 256) for _ in range(4)]
OT = [alloc(64 * 32 * FR) for _ in range(2)]
H = [alloc(64 * 112 * FR) for _ in range(2)]
KVS = 2304
KVP = [alloc(16 * 16 * KVS) for _ in range(2)]
STAMP = alloc(256 * 4 * 64 * 8)
WS_USED = off

EV_KV, EV_OT, EV_X1, EV_HA, EV_HB, EV_X2 = range(6)
NEV = 6
def cnt_off(layer, ev):
    return CNT + ((layer * NEV + ev) * 16) * 256
NCNT = 2 * NEV * 16
assert NCNT <= 256
```

```python
import os, sys
from asmlib import *
import layout as L

STOP = int(os.environ.get("STOP", "99"))
STAMPS = int(os.environ.get("STAMPS", "0"))
MAP = int(os.environ.get("MAP", "0"))
MFMA = "v_mfma_f32_32x32x16_bf16"
WS_BYTES = 268435456
SPIN_MAX = 1 << 20

LOG2E = 0x3fb8aa3b
LN2 = 0x3f317218
EPS6 = 0x358637bd
DELTA = 0x35c1a3be
EPS5 = 0x3727c5ac
INV512 = 0x3b000000


def flat(lst):
    out = []
    for x in lst:
        if isinstance(x, list):
            out.extend(flat(x))
        else:
            out.append(x)
    return out


N_QKV, N_WO, N_GU, N_WD, N_X = 48, 16, 112, 56, 64
PREP_WGS = N_QKV + N_WO + N_GU + N_WD + N_X


def gen_prep():
    p = Prog("prep")
    I = p.I
    end = p.label("end")
    I("s_cmp_ge_u32", "s2", PREP_WGS)
    I("s_cbranch_scc1", end)
    I("s_load_dwordx16", "s[16:31]", "s[0:1]", 0)
    I("s_load_dwordx2", "s[32:33]", "s[0:1]", 72)
    I("v_lshrrev_b32", "v2", 6, "v0")
    I("v_and_b32", "v3", 63, "v0")
    I("v_readfirstlane_b32", "s94", "v2")
    I("v_lshlrev_b32", "v1", 4, "v3")
    I("v_mov_b32", "v5", "0x3f803f80")
    I("s_mov_b32", "s7", "0x20000")
    I("s_mov_b32", "s11", "0x20000")
    I("s_mov_b32", "s15", "0x20000")
    I("s_mov_b32", "s6", WS_BYTES)
    I("s_mov_b32", "s4", "s32")
    I("s_and_b32", "s5", "s33", "0xffff")
    nz = p.label("nz")
    I("s_cmp_ge_u32", "s2", L.NCNT)
    I("s_cbranch_scc1", nz)
    I("s_cmp_lg_u32", "s94", 0)
    I("s_cbranch_scc1", nz)
    I("v_mov_b32", "v8", 0)
    I("v_lshlrev_b32", "v9", 2, "v3")
    I("s_lshl_b32", "s40", "s2", 8)
    I("s_add_u32", "s40", "s40", L.CNT)
    I("buffer_store_dword", "v8", "v9", "s[4:7]", "s40", mods="offen", raw=True)
    p.place(nz)

    l_wo, l_gu, l_wd, l_x, l_pack = (p.label(n) for n in ("wo", "gu", "wd", "x", "pack"))

    def set_srd(dst, ptr, nbytes):
        I("s_mov_b32", S(dst), S(ptr))
        I("s_and_b32", S(dst + 1), S(ptr + 1), "0xffff")
        I("s_mov_b32", S(dst + 2), nbytes)

    I("s_cmp_ge_u32", "s2", N_QKV)
    I("s_cbranch_scc1", l_wo)
    set_srd(8, 18, 512 * 1536 * 2)
    set_srd(12, 18, 512 * 1536 * 2)
    I("s_mov_b32", "s40", 3072)
    I("s_and_b32", "s45", "s2", 3)
    I("s_and_b32", "s46", "s2", "0xfc")
    I("s_add_u32", "s46", "s46", "s94")
    I("s_mul_i32", "s41", "s45", 128 * 3072)
    I("s_lshl_b32", "s47", "s46", 6)
    I("s_add_u32", "s41", "s41", "s47")
    I("s_add_u32", "s42", "s41", 32)
    I("s_and_b32", "s47", "s46", 15)
    I("s_lshr_b32", "s48", "s46", 4)
    I("s_add_u32", "s48", "s48", 2)
    I("s_cmp_ge_u32", "s48", 3)
    I("s_cselect_b32", "s49", 3, 0)
    I("s_sub_u32", "s48", "s48", "s49")
    I("s_mul_i32", "s47", "s47", 3)
    I("s_add_u32", "s47", "s47", "s48")
    I("s_lshl_b32", "s43", "s47", 15)
    I("s_lshl_b32", "s49", "s45", 13)
    I("s_add_u32", "s43", "s43", "s49")
    I("s_add_u32", "s43", "s43", L.WQKV_P)
    I("s_lshl_b32", "s44", "s47", 10)
    I("s_add_u32", "s44", "s44", L.CSQ)
    I("s_branch", l_pack)

    p.place(l_wo)
    I("s_cmp_ge_u32", "s2", N_QKV + N_WO)
    I("s_cbranch_scc1", l_gu)
    set_srd(8, 20, 512 * 512 * 2)
    set_srd(12, 20, 512 * 512 * 2)
    I("s_mov_b32", "s40", 1024)
    I("s_sub_u32", "s50", "s2", N_QKV)
    I("s_and_b32", "s45", "s50", 3)
    I("s_and_b32", "s46", "s50", "0xfc")
    I("s_add_u32", "s46", "s46", "s94")
    I("s_lshl_b32", "s41", "s45", 17)
    I("s_lshl_b32", "s47", "s46", 6)
    I("s_add_u32", "s41", "s41", "s47")
    I("s_add_u32", "s42", "s41", 32)
    I("s_lshl_b32", "s43", "s46", 15)
    I("s_lshl_b32", "s49", "s45", 13)
    I("s_add_u32", "s43", "s43", "s49")
    I("s_add_u32", "s43", "s43", L.WO_P)
    I("s_mov_b32", "s44", 0)
    I("s_branch", l_pack)

    p.place(l_gu)
    I("s_cmp_ge_u32", "s2", N_QKV + N_WO + N_GU)
    I("s_cbranch_scc1", l_wd)
    set_srd(8, 24, 512 * 1792 * 2)
    set_srd(12, 26, 512 * 1792 * 2)
    I("s_mov_b32", "s40", 3584)
    I("s_sub_u32", "s50", "s2", N_QKV + N_WO)
    I("s_and_b32", "s45", "s50", 3)
    I("s_and_b32", "s46", "s50", "0xfc")
    I("s_add_u32", "s46", "s46", "s94")
    I("s_mul_i32", "s41", "s45", 128 * 3584)
    I("s_lshl_b32", "s47", "s46", 5)
    I("s_add_u32", "s41", "s41", "s47")
    I("s_mov_b32", "s42", "s41")
    I("s_lshl_b32", "s43", "s46", 15)
    I("s_lshl_b32", "s49", "s45", 13)
    I("s_add_u32", "s43", "s43", "s49")
    I("s_add_u32", "s43", "s43", L.WGU_P)
    I("s_lshl_b32", "s44", "s46", 10)
    I("s_add_u32", "s44", "s44", L.CSG)
    I("s_branch", l_pack)

    p.place(l_wd)
    I("s_cmp_ge_u32", "s2", N_QKV + N_WO + N_GU + N_WD)
    I("s_cbranch_scc1", l_x)
    set_srd(8, 28, 1792 * 512 * 2)
    set_srd(12, 28, 1792 * 512 * 2)
    I("s_mov_b32", "s40", 1024)
    I("s_sub_u32", "s50", "s2", N_QKV + N_WO + N_GU)
    I("s_lshr_b32", "s45", "s50", 2)
    I("s_and_b32", "s46", "s50", 3)
    I("s_lshl_b32", "s46", "s46", 2)
    I("s_add_u32", "s46", "s46", "s94")
    I("s_lshl_b32", "s41", "s45", 17)
    I("s_lshl_b32", "s47", "s46", 6)
    I("s_add_u32", "s41", "s41", "s47")
    I("s_add_u32", "s42", "s41", 32)
    I("s_mul_i32", "s43", "s46", 112 * 1024)
    I("s_lshl_b32", "s49", "s45", 13)
    I("s_add_u32", "s43", "s43", "s49")
    I("s_add_u32", "s43", "s43", L.WD_P)
    I("s_mov_b32", "s44", 0)

    p.place(l_pack)
    I("v_lshrrev_b32", "v6", 1, "v3")
    I("v_mul_lo_u32", "v6", "v6", "s40")
    I("v_and_b32", "v7", 1, "v3")
    I("v_lshlrev_b32", "v7", 4, "v7")
    I("v_add_u32", "v6", "v6", "v7")
    I("s_lshl_b32", "s51", "s94", 13)
    I("s_lshl_b32", "s52", "s40", 5)
    for img, (srd, so) in enumerate((("s[8:11]", "s41"), ("s[12:15]", "s42"))):
        for i in range(4):
            I("s_add_u32", "m0", "s51", img * 4096 + i * 1024)
            I("buffer_load_dwordx4", "v6", srd, so, mods="offen lds", tag="dma")
            if i < 3:
                I("s_add_u32", so, so, "s52")
    I("v_lshrrev_b32", "v7", 4, "v3")
    I("v_and_b32", "v7", 1, "v7")
    I("v_lshlrev_b32", "v7", 12, "v7")
    I("v_lshrrev_b32", "v8", 5, "v3")
    I("v_lshlrev_b32", "v8", 7, "v8")
    I("v_add_u32", "v7", "v7", "v8")
    I("v_and_b32", "v8", 15, "v3")
    I("v_lshlrev_b32", "v8", 3, "v8")
    I("v_add_u32", "v7", "v7", "v8")
    I("v_add_u32", "v7", "s51", "v7")
    I("v_mov_b32", "v10", 0)
    I("s_add_u32", "s53", "s43", 4096)
    p.wait_tag("dma")
    for j in range(8):
        I("ds_read_b64_tr_b16", V(16 + 4 * j, 2), "v7", mods=f"offset:{j * 512}")
        I("ds_read_b64_tr_b16", V(18 + 4 * j, 2), "v7", mods=f"offset:{j * 512 + 256}")
    for j in range(8):
        I("buffer_store_dwordx4", V(16 + 4 * j, 4), "v1", "s[4:7]", "s43" if j < 4 else "s53",
          mods=f"offen offset:{(j & 3) * 1024}")
        for q in range(4):
            I("v_dot2_f32_bf16", "v10", V(16 + 4 * j + q), "v5", "v10")
    I("s_cmp_eq_u32", "s44", 0)
    I("s_cbranch_scc1", end)
    I("v_mov_b32", "v11", "v10")
    I("v_permlane32_swap_b32", "v10", "v11")
    I("v_add_f32", "v10", "v10", "v11")
    I("v_cvt_pk_bf16_f32", "v12", "v10", "v10")
    I("v_and_b32", "v11", "0xffff0000", "v12")
    I("v_sub_f32", "v11", "v10", "v11")
    I("v_cvt_pk_bf16_f32", "v13", "v11", "v11")
    I("v_and_b32", "v9", 31, "v3")
    I("v_lshlrev_b32", "v9", 4, "v9")
    I("s_lshr_b32", "s46", "s45", 1)
    I("s_lshl_b32", "s46", "s46", 9)
    I("s_and_b32", "s47", "s45", 1)
    I("s_lshl_b32", "s47", "s47", 3)
    I("s_add_u32", "s44", "s44", "s46")
    I("s_add_u32", "s44", "s44", "s47")
    I("buffer_store_dwordx2", "v[12:13]", "v9", "s[4:7]", "s44", mods="offen")
    I("s_branch", end)

    p.place(l_x)
    p.wait_vm_all()
    p.wait_lgkm_all()
    set_srd(8, 16, 2048 * 512 * 2)
    I("s_sub_u32", "s50", "s2", N_QKV + N_WO + N_GU + N_WD)
    I("v_and_b32", "v6", 31, "v3")
    I("v_lshlrev_b32", "v6", 10, "v6")
    I("v_lshrrev_b32", "v7", 5, "v3")
    I("v_lshlrev_b32", "v7", 4, "v7")
    I("v_add_u32", "v6", "v6", "v7")
    I("s_lshl_b32", "s41", "s50", 15)
    I("s_lshl_b32", "s42", "s94", 8)
    I("s_add_u32", "s42", "s41", "s42")
    for j in range(8):
        I("buffer_load_dwordx4", V(16 + 4 * j, 4), "v6", "s[8:11]", "s42", mods=f"offen offset:{j * 32}")
    I("s_lshl_b32", "s43", "s94", 13)
    I("s_add_u32", "s43", "s43", "s41")
    I("s_add_u32", "s43", "s43", L.X[0])
    I("s_add_u32", "s53", "s43", 4096)
    I("s_lshl_b32", "s44", "s50", 12)
    I("s_lshl_b32", "s45", "s94", 10)
    I("s_add_u32", "s44", "s44", "s45")
    I("s_add_u32", "s44", "s44", L.ST[0])
    I("v_lshlrev_b32", "v9", 2, "v3")
    for jj in range(4):
        s, ss = 48 + 2 * jj, 49 + 2 * jj
        I("v_mov_b32", V(s), 0)
        I("v_mov_b32", V(ss), 0)
        for j in (2 * jj, 2 * jj + 1):
            b = 16 + 4 * j
            for q in range(4):
                I("v_dot2_f32_bf16", V(s), V(b + q), "v5", V(s))
                I("v_dot2_f32_bf16", V(ss), V(b + q), V(b + q), V(ss))
            I("v_permlane32_swap_b32", V(b), V(b + 2))
            I("v_permlane32_swap_b32", V(b + 1), V(b + 3))
            I("buffer_store_dwordx4", V(b, 4), "v1", "s[4:7]", "s43" if j < 4 else "s53",
              mods=f"offen offset:{(j & 3) * 1024}")
        I("v_permlane32_swap_b32", V(s), V(ss))
        I("v_add_f32", V(s), V(s), V(ss))
        I("buffer_store_dword", V(s), "v9", "s[4:7]", "s44", mods=f"offen offset:{jj * 256}")
    p.place(end)
    I("s_endpgm")
    return p


SLOT = 32768
RED = 3 * SLOT
SCR = RED + 49152
KVPART = SCR
KVFIN = SCR + 9216
RSTD = SCR + 10496
WS = "s[4:7]"
OUT = "s[8:11]"

sG, sC, sW, sW8K = 12, 13, 14, 15
sTB32K, sTBST, sWQKV, sWGU, sCSQ, sCSG, sOTST, sHST = 16, 17, 18, 19, 20, 21, 22, 23
sOT0, sOT1, sWO0, sWO1, sH0, sH1, sWD0, sWD1 = 24, 25, 26, 27, 28, 29, 30, 31
sXIO, sSTO, sKVST, sKVLD, sGC, sCC, sOUT = 32, 33, 34, 35, 36, 37, 38
sDELTA, sLN2 = 39, 40
sT = 44
sM34 = 56
sHM = 58
sLO = 60
sP = 62
sSTMP = 66

vF0, vF1, vF2, vL4 = 1, 2, 3, 4
vKVW, vZW, vKVR = 5, 6, 7
vONES = 8
vRW = 12
vRR = 15
vKFW, vKFR, vRS, vRS2 = 16, 17, 18, 19
vMEAN = 20
vRSW, vRSR, vOUT = 24, 25, 26
vT = 27
vSTAMP = 31
ACC = 32
WB = 96
CS = 132
WDV = 160
WDA = 128


class Main:
    def __init__(self):
        self.p = Prog("main")
        self.nstamp = 0

    def I(self, *a, **k):
        return self.p.I(*a, **k)

    def stamp(self, name):
        if not STAMPS:
            return
        I = self.I
        self.p.comment(f"stamp {self.nstamp} {name}")
        I("s_memtime", S(sSTMP, 2))
        self.p.wait_lgkm_all()
        I("v_writelane_b32", V(vSTAMP), S(sSTMP), self.nstamp)
        print(f"stamp {self.nstamp}: {name}", file=sys.stderr)
        self.nstamp += 1

    def frag_ops(self, kind, items, st, sc1, tag=None):
        groups = []
        cur = None
        for reg, sb, off in items:
            g = []
            key = (sb, off & ~4095)
            if key != cur:
                g.append(Inst("s_add_u32", [S(st), S(sb), off & ~4095]))
                cur = key
            m = "offen"
            if off & 4095:
                m += f" offset:{off & 4095}"
            if sc1:
                m += " sc1"
            g.append(Inst(kind, [reg, V(vF0), WS, S(st)], m, tag))
            groups.append(g)
        return groups

    def dma_block(self, sb, goff, slot, st, tag):
        groups = []
        for h in range(2):
            g = [Inst("s_add_u32", [S(st), S(sb), goff + h * 4096]),
                 Inst("s_add_u32", ["m0", S(sW8K), slot * SLOT + h * 4096])]
            for q in range(4):
                m = "offen" + (f" offset:{q * 1024}" if q else "") + " lds"
                g.append(Inst("buffer_load_dwordx4", [V(vF0), WS, S(st)], m, tag))
            groups.append(g)
        return groups

    def lds_frag(self, dst, addr):
        base = (vF0, vF1, vF2)[addr >> 16]
        off = addr & 0xffff
        return Inst("ds_read_b128", [dst, V(base)], f"offset:{off}" if off else "")

    def emit(self, lst):
        self.p.extend(flat(lst))

    def arrive(self, tag, cnt_base, sgrp):
        I, p = self.I, self.p
        p.wait_tag(tag)
        p.wait_lgkm_all()
        I("s_barrier")
        skip = p.label("arr")
        I("s_cmp_lg_u32", S(sW), 0)
        I("s_cbranch_scc1", skip)
        I("s_add_u32", S(sP), S(sgrp), cnt_base, raw=True)
        I("v_mov_b32", V(vT), 1, raw=True)
        I("s_mov_b64", "exec", 1, raw=True)
        I("buffer_atomic_add", V(vT), "off", WS, S(sP), mods="sc1", raw=True)
        I("s_mov_b64", "exec", -1, raw=True)
        p.place(skip)

    def poll(self, cnt_base, sgrp, target=16):
        I, p = self.I, self.p
        loop, done = p.label("poll"), p.label("pdone")
        I("s_add_u32", S(sP), S(sgrp), cnt_base)
        I("s_mov_b32", S(sP + 1), 0)
        p.place(loop)
        I("buffer_load_dword", V(vT), "off", WS, S(sP), mods="sc1", raw=True)
        I("s_waitcnt", "vmcnt(0)", raw=True)
        I("v_readfirstlane_b32", S(sP + 2), V(vT), raw=True)
        I("s_add_u32", S(sP + 1), S(sP + 1), 1, raw=True)
        I("s_cmp_ge_u32", S(sP + 2), target, raw=True)
        I("s_cbranch_scc1", done, raw=True)
        I("s_sleep", 1, raw=True)
        I("s_cmp_lt_u32", S(sP + 1), SPIN_MAX, raw=True)
        I("s_cbranch_scc1", loop, raw=True)
        p.place(done)
        p.wait_vm_all()

    def prologue(self):
        I, p = self.I, self.p
        self.end = p.label("end")
        I("s_cmp_ge_u32", "s2", 256)
        I("s_cbranch_scc1", self.end)
        I("s_load_dwordx2", "s[4:5]", "s[0:1]", 72)
        I("s_load_dwordx2", "s[8:9]", "s[0:1]", 56)
        I("v_lshrrev_b32", V(vT), 6, "v0")
        I("v_and_b32", "v0", 63, "v0")
        I("v_readfirstlane_b32", S(sW), V(vT))
        I("v_lshlrev_b32", V(vF0), 4, "v0")
        I("s_and_b32", "s44", "s2", 7)
        I("s_lshr_b32", "s45", "s2", 3)
        if MAP == 0:
            I("s_lshl_b32", S(sG), "s44", 1)
            I("s_lshr_b32", "s46", "s45", 4)
            I("s_add_u32", S(sG), S(sG), "s46")
            I("s_and_b32", S(sC), "s45", 15)
        else:
            I("s_lshr_b32", S(sG), "s44", 1)
            I("s_lshl_b32", S(sG), S(sG), 2)
            I("s_lshr_b32", "s46", "s45", 3)
            I("s_add_u32", S(sG), S(sG), "s46")
            I("s_and_b32", S(sC), "s44", 1)
            I("s_lshl_b32", S(sC), S(sC), 3)
            I("s_and_b32", "s46", "s45", 7)
            I("s_add_u32", S(sC), S(sC), "s46")
        I("s_mov_b32", "s6", WS_BYTES)
        I("s_mov_b32", "s7", "0x20000")
        I("s_lshl_b32", S(sW8K), S(sW), 13)
        I("s_mul_i32", S(sWQKV), S(sC), 3 * 32768)
        I("s_add_u32", S(sWQKV), S(sWQKV), S(sW8K))
        I("s_lshl_b32", "s46", S(sG), 2)
        I("s_add_u32", "s46", "s46", S(sW))
        I("s_lshl_b32", S(sTB32K), "s46", 15)
        I("s_lshl_b32", S(sTBST), "s46", 12)
        I("s_mul_i32", S(sCSQ), S(sC), 3072)
        I("v_lshlrev_b32", V(vL4), 2, "v0")
        I("s_and_b32", "s5", "s5", "0xffff")
        self.p.capture()
        I("s_mov_b32", "s10", 2048 * 512 * 2)
        I("s_mov_b32", "s11", "0x20000")
        I("s_and_b32", "s9", "s9", "0xffff")
        I("v_add_u32", V(vF1), 0x10000, V(vF0))
        I("v_add_u32", V(vF2), 0x20000, V(vF0))
        I("s_mul_i32", S(sWGU), S(sC), 7 * 32768)
        I("s_add_u32", S(sWGU), S(sWGU), S(sW8K))
        I("s_mul_i32", S(sCSG), S(sC), 7168)
        I("s_lshl_b32", "s47", S(sC), 11)
        I("s_add_u32", S(sOTST), S(sTB32K), "s47")
        I("s_lshr_b32", "s46", S(sTB32K), 15)
        I("s_mul_i32", S(sHST), "s46", 112 * 1024)
        I("s_add_u32", S(sHST), S(sHST), S(sCSG))
        I("s_lshl_b32", "s46", S(sG), 2)
        I("s_lshr_b32", "s47", S(sC), 3)
        I("s_lshl_b32", "s47", "s47", 1)
        I("s_add_u32", "s46", "s46", "s47")
        I("s_lshr_b32", "s47", S(sW), 1)
        I("s_add_u32", "s46", "s46", "s47")
        I("s_xor_b32", "s47", "s46", 1)
        I("s_and_b32", "s48", S(sC), 7)
        I("s_lshl_b32", "s48", "s48", 1)
        I("s_and_b32", "s49", S(sW), 1)
        I("s_add_u32", "s48", "s48", "s49")
        I("s_xor_b32", "s49", "s48", 1)
        I("s_mul_i32", "s50", S(sW), 28 * 1024)
        for dst, src in ((sOT0, 46), (sOT1, 47), (sWO0, 48), (sWO1, 49)):
            I("s_lshl_b32", S(dst), S(src), 15)
            I("s_add_u32", S(dst), S(dst), S(sW8K))
        for dst, src in ((sH0, 46), (sH1, 47), (sWD0, 48), (sWD1, 49)):
            I("s_mul_i32", S(dst), S(src), 112 * 1024)
            I("s_add_u32", S(dst), S(dst), "s50")
        I("s_lshl_b32", S(sXIO), "s46", 15)
        I("s_lshl_b32", "s51", "s48", 11)
        I("s_add_u32", S(sXIO), S(sXIO), "s51")
        I("s_lshl_b32", S(sSTO), "s46", 12)
        I("s_lshl_b32", "s51", "s48", 8)
        I("s_add_u32", S(sSTO), S(sSTO), "s51")
        I("s_lshl_b32", S(sOUT), "s46", 15)
        I("s_lshl_b32", "s51", "s48", 6)
        I("s_add_u32", S(sOUT), S(sOUT), "s51")
        I("s_mul_i32", "s51", S(sW), 544)
        I("s_mul_i32", S(sKVLD), S(sC), 16 * L.KVS)
        I("s_add_u32", S(sKVLD), S(sKVLD), "s51")
        I("s_mul_i32", S(sKVST), S(sG), L.KVS)
        I("s_add_u32", S(sKVST), S(sKVST), S(sKVLD))
        I("s_lshl_b32", S(sGC), S(sG), 8)
        I("s_lshl_b32", S(sCC), S(sC), 8)
        I("s_mov_b32", S(sDELTA), DELTA)
        I("s_mov_b32", S(sLN2), LN2)
        I("s_mov_b32", S(sM34), -1)
        I("s_mov_b32", S(sM34 + 1), 3)
        I("s_mov_b32", S(sHM), "0xffff0000")
        I("s_mov_b32", S(sHM + 1), "0xffff0000")
        I("s_mov_b32", S(sLO), -1)
        I("s_mov_b32", S(sLO + 1), 0)
        for q in range(4):
            I("v_mov_b32", V(vONES + q), "0x3f803f80")
        t0, t1 = vT, vT + 1
        I("s_mul_i32", "s52", S(sW), 2304)
        I("s_add_u32", "s52", "s52", KVPART)
        I("v_bfe_u32", V(t0), "v0", 4, 1)
        I("v_mul_u32_u24", V(t0), 1088, V(t0))
        I("v_lshrrev_b32", V(t1), 5, "v0")
        I("v_lshl_add_u32", V(t0), V(t1), 5, V(t0))
        I("v_add_u32", V(t0), "s52", V(t0))
        I("v_add_u32", V(vZW), 1024, V(t0))
        I("v_and_b32", V(t1), 15, "v0")
        I("v_lshl_add_u32", V(vKVW), V(t1), 6, V(t0))
        I("s_add_u32", "s52", "s51", KVPART)
        I("v_add_u32", V(vKVR), "s52", V(vF0))
        I("s_mul_i32", "s52", S(sW), 272)
        I("s_add_u32", "s52", "s52", KVFIN)
        I("v_lshlrev_b32", V(t0), 3, "v0")
        I("v_add_u32", V(vKFW), "s52", V(t0))
        I("v_and_b32", V(t0), 31, "v0")
        I("v_min_u32", V(t0), 16, V(t0))
        I("v_lshlrev_b32", V(t0), 5, V(t0))
        I("v_lshrrev_b32", V(t1), 5, "v0")
        I("v_lshl_add_u32", V(t0), V(t1), 4, V(t0))
        I("v_add_u32", V(vKFR), KVFIN, V(t0))
        I("s_lshl_b32", "s52", S(sW), 8)
        I("s_add_u32", "s52", "s52", RSTD)
        I("v_add_u32", V(vRSW), "s52", V(vL4))
        I("v_lshlrev_b32", V(t1), 4, V(t1))
        I("v_add_u32", V(vRSR), "s52", V(t1))
        for u in (1, 2, 3):
            I("s_xor_b32", "s52", S(sW), u)
            I("s_mul_i32", "s52", "s52", 12288)
            I("s_add_u32", "s52", "s52", RED + (u - 1) * 4096)
            I("v_add_u32", V(vRW + u - 1), "s52", V(vF0))
        I("s_mul_i32", "s52", S(sW), 12288)
        I("s_add_u32", "s52", "s52", RED)
        I("v_add_u32", V(vRR), "s52", V(vF0))
        I("v_and_b32", V(t0), 31, "v0")
        I("v_lshlrev_b32", V(t0), 10, V(t0))
        I("v_add_u32", V(vOUT), V(t0), V(t1))
        if STAMPS:
            I("v_mov_b32", V(vSTAMP), 0)
        self.setup_rest = self.p.end_capture()

    def act_loads(self, xi):
        g = [[Inst("s_add_u32", [S(sT), S(sTBST), L.ST[xi]])]]
        for j in range(16):
            g.append([Inst("buffer_load_dword", [V(80 + j), V(vL4), WS, S(sT)],
                           "offen" + (f" offset:{j * 256}" if j else "") + " sc1")])
        g += self.frag_ops("buffer_load_dwordx4", [(A(4 * kc, 4), sTB32K, L.X[xi] + kc * 1024) for kc in range(32)],
                           sT, True)
        return g

    def stats_calc(self, second):
        self.p.capture()
        I = self.I
        for st in (8, 4, 2, 1):
            for j in range(st):
                I("v_add_f32", V(80 + j), V(80 + j), V(80 + j + st))
        I("v_mov_b32", "v81", "v80")
        I("v_permlane32_swap_b32", "v80", "v81")
        I("v_mul_f32", "v80", f"0x{INV512 | 0x80000000:08x}", "v80")
        I("v_mul_f32", "v81", f"0x{INV512:08x}", "v81")
        I("v_fma_f32", "v81", "-v80", "v80", "v81")
        I("v_max_f32", "v81", 0, "v81")
        I("v_add_f32", "v81", f"0x{EPS5:08x}", "v81")
        I("v_rsq_f32", V(vRS), "v81")
        I("v_cvt_pk_bf16_f32", "v82", "v80", "v80")
        I("v_and_b32", "v82", "0xffff0000", "v82")
        I("v_sub_f32", "v82", "v80", "v82")
        I("v_cvt_pk_bf16_f32", V(vMEAN), "v80", "v82")
        if second == "log2e":
            I("v_mul_f32", V(vRS2), f"0x{LOG2E:08x}", V(vRS))
        else:
            I("v_mul_f32", V(vRS2), V(vRS), V(vRS))
        for q in (1, 2, 3):
            I("v_mov_b32", V(vMEAN + q), V(vMEAN))
        return self.p.end_capture()

    def phi(self, dst_pk, src, scale):
        I = self.I
        for r in range(16):
            I("v_fma_f32", V(src + r), V(src + r), scale(r), S(sDELTA))
        for r in range(16):
            t = vT + (r & 3)
            I("v_exp_f32", V(t), V(src + r), mods="clamp")
            I("v_max_f32", V(src + r), S(sDELTA), V(src + r))
            I("v_fma_f32", V(src + r), V(src + r), S(sLN2), V(t))
            if r & 1:
                I("v_cvt_pk_bf16_f32", V(dst_pk + (r >> 1)), V(src + r - 1), V(src + r))

    def phase1(self, ly):
        I, p = self.I, self.p
        xi = 2 * ly
        if ly == 0:
            dm = []
            for t in range(3):
                dm += self.dma_block(sWQKV, L.WQKV_P + t * 32768, t, sT + 1, "wqkv")
            self.emit(dm)
        else:
            self.poll(L.cnt_off(ly - 1, L.EV_X2), sGC)
        self.stamp("p1 start")
        self.emit(self.act_loads(xi))
        self.emit(self.frag_ops("buffer_load_dwordx4", [(V(CS + 4 * t, 4), sCSQ, L.CSQ + t * 1024) for t in range(3)],
                                sT + 1, False))
        if ly == 0:
            self.emit(self.setup_rest)
        p.wait_tag("wqkv")
        I("s_barrier")
        aK, aV, aQ = ACC, ACC + 16, ACC + 32
        NST = 3

        def wb(kc, t):
            return V(WB + ((kc % NST) * 3 + t) * 4, 4)

        def reads(kc):
            return [self.lds_frag(wb(kc, t), t * SLOT + kc * 1024) for t in range(3)]

        main = reads(0) + reads(1)
        for kc in range(32):
            if kc + 2 < 32:
                main += reads(kc + 2)
            act = A(4 * kc, 4)
            c = lambda a: (0 if kc == 0 else V(a, 16))
            main.append(Inst(MFMA, [V(aK, 16), act, wb(kc, 0), c(aK)]))
            main.append(Inst(MFMA, [V(aV, 16), act, wb(kc, 1), c(aV)]))
            main.append(Inst(MFMA, [V(aQ, 16), wb(kc, 2), act, c(aQ)]))
        fill = self.stats_calc("log2e")
        p.capture()
        I("v_cndmask_b32", V(vT), V(vRS), V(vRS2), S(sLO, 2))
        I("ds_write_b32", V(vRSW), V(vT))
        fill += p.end_capture()
        self.emit(interleave(main, fill, per=2, start=6))
        I(MFMA, V(aK, 16), V(vMEAN, 4), V(CS, 4), V(aK, 16))
        I(MFMA, V(aV, 16), V(vMEAN, 4), V(CS + 4, 4), V(aV, 16))
        I(MFMA, V(aQ, 16), V(CS + 8, 4), V(vMEAN, 4), V(aQ, 16))
        RL, RV = WB, WB + 16
        p.wait_lgkm_all()
        for a in range(4):
            I("ds_read_b128", V(RL + 4 * a, 4), V(vRSR), mods=f"offset:{a * 32}")
        for a in range(4):
            I("ds_read_b128", V(RV + 4 * a, 4), V(vRSR), mods=f"offset:{128 + a * 32}")
        self.stamp("p1 mfma done")
        PK, VV = 80, 88
        self.phi(PK, aK, lambda r: V(RL + r))
        for r in range(16):
            I("v_mul_f32", V(aV + r), V(aV + r), V(RV + r))
            if r & 1:
                I("v_cvt_pk_bf16_f32", V(VV + (r >> 1)), V(aV + r - 1), V(aV + r))
        D, DZ = aK, aV
        I(MFMA, V(D, 16), V(PK, 4), V(VV, 4), 0)
        I(MFMA, V(DZ, 16), V(PK, 4), V(vONES, 4), 0)
        I(MFMA, V(D, 16), V(PK + 4, 4), V(VV + 4, 4), V(D, 16))
        I(MFMA, V(DZ, 16), V(PK + 4, 4), V(vONES, 4), V(DZ, 16))
        for j in range(8):
            I("v_cndmask_b32", V(D + j), V(D + j), V(D + 8 + j), S(sHM, 2))
        for j in range(8):
            I("v_cndmask_b32", V(DZ + j), V(DZ + j), V(DZ + 8 + j), S(sHM, 2))
        I("ds_write_b128", V(vKVW), V(D, 4))
        I("ds_write_b128", V(vKVW), V(D + 4, 4), mods="offset:16")
        I("ds_write_b128", V(vZW), V(DZ, 4))
        I("ds_write_b128", V(vZW), V(DZ + 4, 4), mods="offset:16")
        p.wait_lgkm_all()
        I("s_barrier")
        for s in range(4):
            I("ds_read_b128", V(D + 4 * s, 4), V(vKVR), mods=f"offset:{s * 2304}" if s else "")
        for q in range(4):
            I("v_add_f32", V(D + q), V(D + q), V(D + 4 + q))
            I("v_add_f32", V(D + 8 + q), V(D + 8 + q), V(D + 12 + q))
        for q in range(4):
            I("v_add_f32", V(D + q), V(D + q), V(D + 8 + q))
        I("s_add_u32", S(sT), S(sKVST), L.KVP[ly])
        I("s_mov_b64", "exec", S(sM34, 2))
        I("buffer_store_dwordx4", V(D, 4), V(vF0), WS, S(sT), mods="offen sc1", tag="kvst")
        I("s_mov_b64", "exec", -1)
        self.arrive("kvst", L.cnt_off(ly, L.EV_KV), sCC)
        self.stamp("p1 kv published")
        wo = [(A(WDA + 4 * (n * 8 + k), 4), (sWO0, sWO1)[n], L.WO_P + k * 1024) for n in range(2) for k in range(8)]
        self.emit(self.frag_ops("buffer_load_dwordx4", wo, sT, False))
        PQ = 80
        self.phi(PQ, aQ, lambda r: V(vRS2))
        self.poll(L.cnt_off(ly, L.EV_KV), sCC)
        self.stamp("p1 kv ready")
        G = WB
        I("s_mov_b64", "exec", S(sM34, 2))
        for gi in range(16):
            off = L.KVP[ly] + gi * L.KVS
            if gi == 0 or True:
                I("s_add_u32", S(sT), S(sKVLD), off)
            I("buffer_load_dwordx4", V(G + 4 * gi, 4), V(vF0), WS, S(sT), mods="offen sc1")
        I("s_mov_b64", "exec", -1)
        dm = []
        for b in range(3):
            dm += self.dma_block(sWGU, L.WGU_P + b * 32768, b, sT + 1, "wgu")
        self.emit(dm)
        for st in (8, 4, 2, 1):
            for j in range(st):
                for q in range(4):
                    I("v_add_f32", V(G + 4 * j + q), V(G + 4 * j + q), V(G + 4 * (j + st) + q))
        I("v_cvt_pk_bf16_f32", V(G), V(G), V(G + 1))
        I("v_cvt_pk_bf16_f32", V(G + 1), V(G + 2), V(G + 3))
        I("s_mov_b64", "exec", S(sM34, 2))
        I("ds_write_b64", V(vKFW), V(G, 2))
        I("s_mov_b64", "exec", -1)
        p.wait_lgkm_all()
        I("s_barrier")
        I("ds_read_b128", V(G, 4), V(vKFR))
        I("ds_read_b128", V(G + 4, 4), V(vKFR), mods="offset:544")
        I(MFMA, V(aK, 16), V(G, 4), V(PQ, 4), 0)
        I(MFMA, V(aV, 16), V(G + 4, 4), V(PQ + 4, 4), 0)
        I("s_add_u32", S(sT), S(sOTST), L.OT[ly])
        for hh, d in enumerate((aK, aV)):
            I("v_add_f32", V(vT), f"0x{EPS6:08x}", V(d + 8))
            I("v_rcp_f32", V(vT), V(vT))
            for j in range(8):
                I("v_mul_f32", V(d + j), V(d + j), V(vT))
                if j & 1:
                    I("v_cvt_pk_bf16_f32", V(d + 8 + (j >> 1)), V(d + j - 1), V(d + j))
            I("buffer_store_dwordx4", V(d + 8, 4), V(vF0), WS, S(sT),
              mods="offen" + (" offset:1024" if hh else "") + " sc1", tag="otst")
        self.arrive("otst", L.cnt_off(ly, L.EV_OT), sGC)
        self.stamp("p1 ot published")

    def resid_load(self, xi):
        return self.frag_ops("buffer_load_dwordx4", [(V(CS + 4 * k, 4), sXIO, L.X[xi] + k * 1024) for k in range(2)],
                             sT + 2, True)

    def tile_epilogue(self, xo, final, tag):
        I, p = self.I, self.p
        for u in (1, 2, 3):
            for q in range(4):
                I("ds_write_b128", V(vRW + u - 1), V(ACC + 16 * u + 4 * q, 4), mods=f"offset:{q * 1024}" if q else "")
        for r in range(16):
            src = CS + (r >> 1)
            if r & 1:
                I("v_and_b32", V(vT), "0xffff0000", V(src))
            else:
                I("v_lshlrev_b32", V(vT), 16, V(src))
            I("v_add_f32", V(ACC + r), V(ACC + r), V(vT))
        p.wait_lgkm_all()
        I("s_barrier")
        for s in range(3):
            for q in range(4):
                I("ds_read_b128", V(ACC + 16 + 16 * s + 4 * q, 4), V(vRR), mods=f"offset:{s * 4096 + q * 1024}")
        for s in range(3):
            for r in range(16):
                I("v_add_f32", V(ACC + r), V(ACC + r), V(ACC + 16 + 16 * s + r))
        O = ACC + 16
        for j in range(8):
            I("v_cvt_pk_bf16_f32", V(O + j), V(ACC + 2 * j), V(ACC + 2 * j + 1))
        if final:
            for k in range(2):
                I("v_permlane32_swap_b32", V(O + 4 * k), V(O + 4 * k + 2))
                I("v_permlane32_swap_b32", V(O + 4 * k + 1), V(O + 4 * k + 3))
                I("buffer_store_dwordx4", V(O + 4 * k, 4), V(vOUT), OUT, S(sOUT),
                  mods="offen" + (" offset:32" if k else ""))
            return
        I("s_add_u32", S(sT), S(sXIO), L.X[xo])
        I("buffer_store_dwordx4", V(O, 4), V(vF0), WS, S(sT), mods="offen sc1", tag=tag)
        I("buffer_store_dwordx4", V(O + 4, 4), V(vF0), WS, S(sT), mods="offen offset:1024 sc1", tag=tag)
        s1, s2 = vT, vT + 1
        I("v_add_f32", V(s1), V(ACC), V(ACC + 1))
        I("v_mul_f32", V(s2), V(ACC), V(ACC))
        I("v_fmac_f32", V(s2), V(ACC + 1), V(ACC + 1))
        for r in range(2, 16):
            I("v_add_f32", V(s1), V(s1), V(ACC + r))
            I("v_fmac_f32", V(s2), V(ACC + r), V(ACC + r))
        I("v_permlane32_swap_b32", V(s1), V(s2))
        I("v_add_f32", V(s1), V(s1), V(s2))
        I("s_add_u32", S(sT + 1), S(sSTO), L.ST[xo])
        I("buffer_store_dword", V(s1), V(vL4), WS, S(sT + 1), mods="offen sc1", tag=tag)

    def mm4(self, w0, w1, x0, x1, first):
        c = lambda u: (0 if first else V(ACC + 16 * u, 16))
        return [Inst(MFMA, [V(ACC, 16), w0, x0, c(0)]),
                Inst(MFMA, [V(ACC + 16, 16), w1, x0, c(1)]),
                Inst(MFMA, [V(ACC + 32, 16), w0, x1, c(2)]),
                Inst(MFMA, [V(ACC + 48, 16), w1, x1, c(3)])]

    def phase2(self, ly):
        I, p = self.I, self.p
        self.emit(self.resid_load(2 * ly))
        self.poll(L.cnt_off(ly, L.EV_OT), sGC)
        self.stamp("p2 ot ready")
        o0 = self.frag_ops("buffer_load_dwordx4", [(A(8 * k, 4), sOT0, L.OT[ly] + k * 1024) for k in range(8)], sT, True)
        o1 = self.frag_ops("buffer_load_dwordx4", [(A(8 * k + 4, 4), sOT1, L.OT[ly] + k * 1024) for k in range(8)], sT + 1, True)
        for k in range(8):
            self.emit([o0[k], o1[k]])
        for k in range(8):
            self.emit(self.mm4(A(WDA + 4 * k, 4), A(WDA + 32 + 4 * k, 4), A(8 * k, 4), A(8 * k + 4, 4), k == 0))
        self.stamp("p2 mfma done")
        self.tile_epilogue(2 * ly + 1, False, "x1st")
        self.arrive("x1st", L.cnt_off(ly, L.EV_X1), sGC)
        self.stamp("p2 x1 published")
        dm = []
        for b in (3, 4):
            dm += self.dma_block(sWGU, L.WGU_P + b * 32768, b, sT + 1, "wgu")
        self.emit(dm)
        self.emit(self.frag_ops("buffer_load_dwordx4", [(V(CS + 4 * b, 4), sCSG, L.CSG + b * 1024) for b in range(7)],
                                sT + 1, False))

    def wd_reg(self, idx):
        return A(WDA + 4 * idx, 4) if idx < 32 else V(WDV + 4 * (idx - 32), 4)

    def p4_order(self):
        a = [7 * cc + b for cc in range(4) for b in range(4)]
        bb = [7 * cc + b for cc in range(4) for b in range(4, 7)]
        return a, bb

    def phase3(self, ly):
        I, p = self.I, self.p
        xi = 2 * ly + 1
        self.poll(L.cnt_off(ly, L.EV_X1), sGC)
        self.stamp("p3 x1 ready")
        self.emit(self.act_loads(xi))
        I("s_barrier")
        NST = 3

        def wb(kc, t):
            return V(WB + ((kc % NST) * 3 + t) * 4, 4)

        def reads(kc):
            return [self.lds_frag(wb(kc, t), t * SLOT + kc * 1024) for t in range(3)]

        accs = [ACC, ACC + 16, ACC + 32, ACC + 48, ACC, ACC + 16, ACC + 32]
        slots = [0, 1, 2, 3, 4, 0, 1]
        main = reads(0) + reads(1)
        for kc in range(32):
            if kc + 2 < 32:
                main += reads(kc + 2)
            for t in range(3):
                main.append(Inst(MFMA, [V(accs[t], 16), wb(kc, t), A(4 * kc, 4), 0 if kc == 0 else V(accs[t], 16)]))
        self.emit(interleave(main, self.stats_calc("sq"), per=2, start=6))
        for t in range(3):
            I(MFMA, V(accs[t], 16), V(CS + 4 * t, 4), V(vMEAN, 4), V(accs[t], 16))
        self.stamp("p3 kouter done")
        I("s_barrier")
        dm = []
        for b in (5, 6):
            dm += self.dma_block(sWGU, L.WGU_P + b * 32768, slots[b], sT + 1, "wgu56")
        self.emit(dm)

        def epi(b, tag):
            p.capture()
            a = accs[b]
            for j in range(8):
                I("v_mul_f32", V(a + j), V(a + j), V(vRS2))
                I("v_mul_f32", V(a + j), V(a + j), V(a + 8 + j))
                if j & 1:
                    I("v_cvt_pk_bf16_f32", V(a + 8 + (j >> 1)), V(a + j - 1), V(a + j))
            lst = p.end_capture()
            lst += self.frag_ops("buffer_store_dwordx4", [(V(a + 8, 4), sHST, L.H[ly] + b * 1024)], sT + 2, True, tag)
            return lst

        oa, ob = self.p4_order()
        wd = []
        for n, ch in enumerate(oa + ob):
            wd += self.frag_ops("buffer_load_dwordx4", [(self.wd_reg(2 * n), sWD0, L.WD_P + ch * 1024)], sT + 3, False)
            wd += self.frag_ops("buffer_load_dwordx4", [(self.wd_reg(2 * n + 1), sWD1, L.WD_P + ch * 1024)], sT + 4, False)

        def block(b):
            NB = 9
            wr = lambda kc: V(WB + (kc % NB) * 4, 4)
            rd = lambda kc: self.lds_frag(wr(kc), slots[b] * SLOT + kc * 1024)
            PRE = 6
            m = [rd(k) for k in range(PRE)]
            for kc in range(32):
                if kc + PRE < 32:
                    m.append(rd(kc + PRE))
                m.append(Inst(MFMA, [V(accs[b], 16), wr(kc), A(4 * kc, 4), 0 if kc == 0 else V(accs[b], 16)]))
            m.append(Inst(MFMA, [V(accs[b], 16), V(CS + 4 * b, 4), V(vMEAN, 4), V(accs[b], 16)]))
            return m

        def mix(a, b):
            out = []
            n = max(len(a), len(b))
            ia = ib = 0
            for k in range(n):
                while ia < len(a) and ia * n <= k * len(a):
                    out.append(a[ia]); ia += 1
                while ib < len(b) and ib * n <= k * len(b):
                    out.append(b[ib]); ib += 1
            return out + a[ia:] + b[ib:]

        self.emit(interleave(block(3), mix(epi(0, "hA") + epi(1, "hA") + epi(2, "hA"), wd[0:14]), start=1))
        self.emit(interleave(block(4), mix(epi(3, "hA"), wd[14:28]), start=1))
        p.wait_tag("wgu56")
        self.arrive("hA", L.cnt_off(ly, L.EV_HA), sGC)
        self.emit(interleave(block(5), mix(epi(4, "hB"), wd[28:42]), start=1))
        self.emit(interleave(block(6), mix(epi(5, "hB"), wd[42:56]), start=1))
        self.stamp("p3 mfma done")
        self.emit(epi(6, "hB"))
        self.arrive("hB", L.cnt_off(ly, L.EV_HB), sGC)
        self.stamp("p3 h published")

    def phase4(self, ly):
        I, p = self.I, self.p
        final = ly == 1
        oa, ob = self.p4_order()
        self.poll(L.cnt_off(ly, L.EV_HA), sGC)
        self.stamp("p4 hA ready")

        def hreg(n, t):
            if n < 16:
                return A(8 * n + 4 * t, 4)
            m = n - 16
            if m < 4:
                return V(WB + 8 * m + 4 * t, 4)
            return A(8 * (m - 4) + 4 * t, 4)

        def hload(n, ch):
            return [self.frag_ops("buffer_load_dwordx4", [(hreg(n, 0), sH0, L.H[ly] + ch * 1024)], sT, True),
                    self.frag_ops("buffer_load_dwordx4", [(hreg(n, 1), sH1, L.H[ly] + ch * 1024)], sT + 1, True)]

        for n, ch in enumerate(oa):
            self.emit(hload(n, ch))
        self.emit(self.resid_load(2 * ly + 1))
        for n in range(12):
            self.emit(self.mm4(self.wd_reg(2 * n), self.wd_reg(2 * n + 1), hreg(n, 0), hreg(n, 1), n == 0))
        self.poll(L.cnt_off(ly, L.EV_HB), sGC)
        self.stamp("p4 hB ready")
        for n, ch in enumerate(ob):
            self.emit(hload(16 + n, ch))
        if not final:
            dm = []
            for t in range(3):
                dm += self.dma_block(sWQKV, L.WQKV_P + t * 32768, t, sT + 2, "wqkv")
            self.emit(dm)
        for n in range(12, 28):
            self.emit(self.mm4(self.wd_reg(2 * n), self.wd_reg(2 * n + 1), hreg(n, 0), hreg(n, 1), False))
        self.stamp("p4 mfma done")
        self.tile_epilogue(2 * ly + 2, final, "x2st")
        if not final:
            self.arrive("x2st", L.cnt_off(ly, L.EV_X2), sGC)
        self.stamp("p4 done")

    def build(self):
        I, p = self.I, self.p
        self.prologue()
        ph = 0
        for ly in range(2):
            for f in (self.phase1, self.phase2, self.phase3, self.phase4):
                if ph <= STOP:
                    f(ly)
                ph += 1
        if STAMPS:
            I("s_lshl_b32", S(sT), "s2", 2)
            I("s_add_u32", S(sT), S(sT), S(sW))
            I("s_lshl_b32", S(sT), S(sT), 8)
            I("s_add_u32", S(sT), S(sT), L.STAMP)
            I("buffer_store_dword", V(vSTAMP), V(vL4), WS, S(sT), mods="offen")
        p.place(self.end)
        I("s_endpgm")
        return p


HEADER = open(os.path.join(os.path.dirname(os.path.abspath(__file__)), "header.txt")).read()


def kd(name, nv, acc, ns=102):
    return f""".p2align 6
.amdhsa_kernel {name}
  .amdhsa_next_free_vgpr {nv}
  .amdhsa_next_free_sgpr {ns}
  .amdhsa_accum_offset {acc}
  .amdhsa_group_segment_fixed_size 0
  .amdhsa_kernarg_size 80
  .amdhsa_user_sgpr_count 2
  .amdhsa_user_sgpr_kernarg_segment_ptr 1
  .amdhsa_system_sgpr_workgroup_id_x 1
.end_amdhsa_kernel
"""


def main():
    prep = gen_prep()
    mn = Main().build()
    out = HEADER
    out += f"; @launch kernel=prep_kernel grid=({PREP_WGS},1,1) block=(256,1,1) lds=32768\n"
    out += "; @launch kernel=main_kernel grid=(256,1,1) block=(256,1,1) lds=163840\n"
    out += '.amdgcn_target "amdgcn-amd-amdhsa--gfx950"\n.text\n'
    for name, p in (("prep_kernel", prep), ("main_kernel", mn)):
        out += f".globl {name}\n.p2align 8\n.type {name},@function\n{name}:\n"
        out += p.finalize() + "\n"
    out += '.section .rodata,"a"\n'
    out += kd("prep_kernel", 64, 64)
    out += kd("main_kernel", 512, 256)
    sys.stdout.write(out)


if __name__ == "__main__":
    main()
```

```python
import re

REG_RE = re.compile(r"\b([vas])\[(\d+):(\d+)\]|\b([vas])(\d+)\b|\b(vcc|exec|m0|scc)\b")


def regs_of(tok):
    out = []
    for m in REG_RE.finditer(tok):
        if m.group(1):
            for i in range(int(m.group(2)), int(m.group(3)) + 1):
                out.append((m.group(1), i))
        elif m.group(4):
            out.append((m.group(4), int(m.group(5))))
        else:
            out.append((m.group(6), 0))
    return out


def R(kind, lo, n=1):
    if n == 1:
        return f"{kind}{lo}"
    return f"{kind}[{lo}:{lo + n - 1}]"


def V(lo, n=1):
    return R("v", lo, n)


def A(lo, n=1):
    return R("a", lo, n)


def S(lo, n=1):
    return R("s", lo, n)


TRANS = ("v_exp_f32", "v_log_f32", "v_rcp_f32", "v_rsq_f32", "v_sqrt_f32", "v_sin_f32", "v_cos_f32")


class Inst:
    __slots__ = ("op", "ops", "mods", "reads", "writes", "cls", "tag", "raw", "srcc", "srcab", "passes", "wide", "comment")

    def __init__(self, op, ops=(), mods="", tag=None, raw=False, comment=""):
        self.op = op
        self.ops = list(ops)
        self.mods = mods
        self.tag = tag
        self.raw = raw
        self.comment = comment
        self.srcc = set()
        self.srcab = set()
        self.passes = 0
        self.wide = set()
        self.classify()

    def text(self):
        if self.cls == "label":
            return f"{self.op}:"
        s = "  " + self.op
        if self.ops:
            s += " " + ", ".join(str(o) for o in self.ops)
        if self.mods:
            s += " " + self.mods
        if self.comment:
            s += "   ; " + self.comment
        return s

    def classify(self):
        op = self.op
        ops = [str(o) for o in self.ops]
        rd, wr = set(), set()
        allr = lambda lst: set(r for t in lst for r in regs_of(t))
        if op.startswith("L_") or op.endswith("_kernel"):
            self.cls = "label"
        elif op.startswith("v_mfma"):
            self.cls = "mfma"
            wr = allr(ops[:1])
            self.srcab = allr(ops[1:3])
            self.srcc = allr(ops[3:4])
            rd = self.srcab | self.srcc
            self.passes = 8 if "32x32x16" in op else 4
        elif op.startswith("ds_read") or op.startswith("ds_bpermute") or op.startswith("ds_swizzle"):
            self.cls = "dsr"
            wr = allr(ops[:1])
            rd = allr(ops[1:])
        elif op.startswith("ds_"):
            self.cls = "dsw"
            rd = allr(ops)
        elif op.startswith("buffer_load") or op.startswith("global_load"):
            if " lds" in (" " + self.mods) or "_lds_" in op:
                self.cls = "dma"
                rd = allr(ops) | {("m0", 0)}
            else:
                self.cls = "vload"
                wr = allr(ops[:1])
                rd = allr(ops[1:])
        elif op.startswith("buffer_store") or op.startswith("global_store"):
            self.cls = "vstore"
            rd = allr(ops)
            if "x4" in op or "x3" in op:
                self.wide = allr(ops[:1]) if op.startswith("buffer") else allr(ops[1:2])
        elif op.startswith("buffer_atomic") or op.startswith("global_atomic"):
            self.cls = "vstore"
            rd = allr(ops)
            assert "sc0" not in self.mods, "returning atomics only in raw code"
        elif op.startswith("s_load") or op.startswith("s_memtime") or op.startswith("s_memrealtime"):
            self.cls = "smem"
            wr = allr(ops[:1])
            rd = allr(ops[1:])
        elif op in ("s_waitcnt", "s_barrier", "s_nop", "s_sleep", "s_setprio", "s_endpgm", "s_branch") or op.startswith("s_cbranch"):
            self.cls = "ctl"
            if op.startswith("s_cbranch_scc"):
                rd = {("scc", 0)}
            if op.startswith("s_cbranch_vcc"):
                rd = {("vcc", 0)}
            if op.startswith("s_cbranch_exec"):
                rd = {("exec", 0)}
        elif op.startswith("s_cmp"):
            self.cls = "salu"
            rd = allr(ops)
            wr = {("scc", 0)}
        elif op.startswith("s_"):
            self.cls = "salu"
            wr = allr(ops[:1]) | {("scc", 0)}
            rd = allr(ops[1:])
            if op in ("s_addk_i32", "s_mulk_i32"):
                rd |= allr(ops[:1])
            if "saveexec" in op:
                wr |= {("exec", 0)}
                rd |= {("exec", 0)}
            if op.startswith("s_cselect") or op.startswith("s_addc"):
                rd |= {("scc", 0)}
        elif op.startswith("v_"):
            self.cls = "valu"
            if op.startswith("v_permlane"):
                wr = allr(ops)
                rd = allr(ops)
            else:
                wr = allr(ops[:1])
                rd = allr(ops[1:])
                if op.startswith("v_fmac") or op.startswith("v_dot2c"):
                    rd |= wr
                if op.startswith("v_add_co") or op.startswith("v_sub_co") or op.startswith("v_addc_co"):
                    wr |= allr(ops[1:2])
                if op.startswith("v_cndmask") and len(ops) == 3:
                    rd |= {("vcc", 0)}
        else:
            raise ValueError("unknown op " + op)
        self.reads, self.writes = rd, wr


class Prog:
    def __init__(self, name):
        self.name = name
        self.ins = []
        self.nlabel = 0

    def I(self, op, *ops, mods="", tag=None, raw=False, comment=""):
        i = Inst(op, ops, mods, tag, raw, comment)
        self.ins.append(i)
        return i

    def label(self, base="L"):
        self.nlabel += 1
        return f"L_{self.name}_{base}_{self.nlabel}"

    def place(self, lab):
        self.ins.append(Inst(lab))

    def wait_tag(self, tag):
        self.ins.append(("wait_tag", tag))

    def wait_vm_all(self):
        self.ins.append(("wait_vm", 0))

    def wait_lgkm_all(self):
        self.ins.append(("wait_lgkm", 0))

    def comment(self, s):
        self.ins.append(("comment", s))

    def capture(self):
        self._saved = getattr(self, "_saved", [])
        self._saved.append(self.ins)
        self.ins = []

    def end_capture(self):
        got = self.ins
        self.ins = self._saved.pop()
        return got

    def extend(self, lst):
        self.ins.extend(lst)

    def finalize(self):
        out = []
        vmq = []
        lgq = []
        smem_pending = set()

        def emit_wait(vm=None, lg=None):
            parts = []
            if vm is not None:
                parts.append(f"vmcnt({min(vm, 63)})")
            if lg is not None:
                parts.append(f"lgkmcnt({min(lg, 15)})")
            push(Inst("s_waitcnt", [" ".join(parts)]))

        def states_since(pred, limit):
            d = 0
            for i in reversed(out):
                if isinstance(i, str):
                    continue
                if i.cls == "label":
                    continue
                if pred(i):
                    return d
                d += (int(i.ops[0]) + 1) if i.op == "s_nop" else 1
                if d >= limit:
                    return None
            return None

        def push(i):
            out.append(i)

        def need_states(i):
            need = 0
            rd, wr = i.reads, i.writes
            vr = {r for r in rd if r[0] in "va"}
            vw = {r for r in wr if r[0] in "va"}
            sr = {r for r in rd if r[0] in ("s", "vcc")}

            def chk(pred, n):
                nonlocal need
                d = states_since(pred, n)
                if d is not None:
                    need = max(need, n - d)

            if i.cls == "mfma":
                chk(lambda p: p.cls == "valu" and (p.writes & vr), 2)
                for ps, n_ov, n_ab in ((8, 10, 12), (4, 6, 8)):
                    chk(lambda p: p.cls == "mfma" and p.passes == ps and (p.writes & i.srcab), n_ab)
                    chk(lambda p: p.cls == "mfma" and p.passes == ps and (p.writes & i.srcc)
                        and not (p.writes == i.srcc and p.passes == i.passes), n_ov)
                    chk(lambda p: p.cls == "mfma" and p.passes == ps and (p.writes & vw)
                        and not (p.writes == i.srcc and p.passes == i.passes), n_ov)
                chk(lambda p: p.cls == "valu" and ("exec", 0) in p.writes, 4)
            if i.cls in ("valu", "vload", "vstore", "dma", "dsr", "dsw"):
                for ps, n in ((8, 12), (4, 8)):
                    chk(lambda p: p.cls == "mfma" and p.passes == ps and (p.writes & (vr | vw)), n)
            if i.cls == "valu":
                for ps, n in ((8, 7), (4, 3)):
                    chk(lambda p: p.cls == "mfma" and p.passes == ps and (p.srcc & vw), n)
                if i.op not in TRANS:
                    chk(lambda p: p.op in TRANS and (p.writes & vr), 1)
                chk(lambda p: p.cls == "valu" and (p.writes & sr), 2)
                if i.op.startswith("v_readfirstlane") or i.op.startswith("v_readlane"):
                    chk(lambda p: p.cls == "valu" and (p.writes & vr), 1)
                    chk(lambda p: p.cls == "valu" and (p.writes & sr), 4)
                if i.op.startswith("v_permlane") or "dpp" in i.op or "row_" in i.mods:
                    chk(lambda p: p.cls == "valu" and (p.writes & vr), 2)
                chk(lambda p: p.wide and (p.wide & vw), 2)
                chk(lambda p: p.op.startswith("v_dot") and p.op != i.op and (p.writes & (vr | vw)), 3)
                if i.op.startswith("v_dot"):
                    ab = set(r for t in i.ops[1:3] for r in regs_of(str(t)))
                    chk(lambda p: p.op == i.op and (p.writes & ab), 3)
            else:
                chk(lambda p: p.op.startswith("v_dot") and (p.writes & (vr | vw)), 3)
                chk(lambda p: p.op in TRANS and (p.writes & vr), 1)
            if i.cls in ("vload", "dsr"):
                chk(lambda p: p.wide and (p.wide & vw), 1)
                for ps, n in ((8, 7), (4, 3)):
                    chk(lambda p: p.cls == "mfma" and p.passes == ps and (p.srcc & vw), n)
            if i.cls in ("vload", "vstore", "dma"):
                chk(lambda p: p.cls == "valu" and (p.writes & sr), 5)
            if i.cls == "dma":
                chk(lambda p: p.cls == "salu" and ("m0", 0) in p.writes, 1)
            if i.cls in ("salu", "ctl", "smem"):
                chk(lambda p: p.cls == "valu" and (p.writes & sr), 4)
            return need

        for i in self.ins:
            if isinstance(i, tuple):
                k, arg = i
                if k == "comment":
                    out.append("  ; ---- " + arg)
                elif k == "wait_tag":
                    idx = max([n for n, e in enumerate(vmq) if e[1] == arg], default=None)
                    if idx is not None:
                        emit_wait(vm=len(vmq) - 1 - idx)
                        del vmq[: idx + 1]
                elif k == "wait_vm":
                    emit_wait(vm=0)
                    vmq.clear()
                elif k == "wait_lgkm":
                    if lgq or smem_pending:
                        emit_wait(lg=0)
                        lgq.clear()
                        smem_pending.clear()
                continue
            if i.cls == "label":
                out.append(i)
                continue
            if not i.raw:
                touched = i.reads | i.writes
                vm = lg = None
                idx = max([n for n, e in enumerate(vmq) if e[0] & touched], default=None)
                if idx is not None:
                    vm = len(vmq) - 1 - idx
                    del vmq[: idx + 1]
                if smem_pending & touched:
                    lg = 0
                    lgq.clear()
                    smem_pending.clear()
                else:
                    idx = max([n for n, e in enumerate(lgq) if e & touched], default=None)
                    if idx is not None:
                        lg = len(lgq) - 1 - idx
                        if smem_pending:
                            lg = 0
                            lgq.clear()
                            smem_pending.clear()
                        else:
                            del lgq[: idx + 1]
                if vm is not None or lg is not None:
                    emit_wait(vm, lg)
            n = need_states(i)
            while n > 0:
                k = min(n, 16)
                push(Inst("s_nop", [k - 1]))
                n -= k
            push(i)
            if not i.raw:
                if i.cls == "vload":
                    vmq.append((set(i.writes), i.tag))
                elif i.cls in ("vstore", "dma"):
                    vmq.append((set(), i.tag))
                elif i.cls == "dsr":
                    lgq.append(set(i.writes))
                elif i.cls == "dsw":
                    lgq.append(set())
                elif i.cls == "smem":
                    smem_pending |= set(i.writes)
                elif i.op == "s_waitcnt":
                    t = str(i.ops[0])
                    m = re.search(r"vmcnt\((\d+)\)", t)
                    if m:
                        n = int(m.group(1))
                        del vmq[: max(0, len(vmq) - n)]
                    m = re.search(r"lgkmcnt\((\d+)\)", t)
                    if m:
                        n = int(m.group(1))
                        if n == 0:
                            smem_pending.clear()
                        del lgq[: max(0, len(lgq) - n)]
        self.out = out
        return "\n".join(x if isinstance(x, str) else x.text() for x in out)


def interleave(main, fill, per=None, start=0):
    slots = [n for n, i in enumerate(main) if isinstance(i, Inst) and i.cls == "mfma"]
    slots = slots[start:]
    out = []
    if not slots:
        return list(main) + list(fill)
    f = list(fill)
    total = len(f)
    done = 0
    sset = {s: k for k, s in enumerate(slots)}
    for n, i in enumerate(main):
        out.append(i)
        if n in sset:
            k = sset[n]
            if per is None:
                want = (total * (k + 1) + len(slots) - 1) // len(slots)
            else:
                want = min(total, per * (k + 1))
            while done < want:
                out.append(f[done])
                done += 1
    out.extend(f[done:])
    return out


def weave(main, *streams):
    slots = [n for n, i in enumerate(main) if isinstance(i, Inst) and i.cls == "mfma"]
    ns = len(slots)
    after = [[] for _ in range(ns)]
    for items, start, end in streams:
        end = min(end, ns)
        span = max(1, end - start)
        tot = len(items)
        for k, it in enumerate(items):
            s = start + (k * span) // max(1, tot)
            after[min(s, ns - 1)].append(it)
    out = []
    sidx = {p: k for k, p in enumerate(slots)}
    for n, i in enumerate(main):
        out.append(i)
        if n in sidx:
            out.extend(after[sidx[n]])
    return out
```

```python
import os, sys
from asmlib import *
import layout as L

STOP = int(os.environ.get("STOP", "99"))
STAMPS = int(os.environ.get("STAMPS", "0"))
MAP = int(os.environ.get("MAP", "1"))
CODEPF = int(os.environ.get("CODEPF", "2"))
MFMA = "v_mfma_f32_32x32x16_bf16"
WS_BYTES = 268435456
SPIN_MAX = 1 << 20

LOG2E = 0x3fb8aa3b
LN2 = 0x3f317218
EPS6 = 0x358637bd
DELTA = 0x35c1a3be
EPS5 = 0x3727c5ac
INV512 = 0x3b000000


def flat(lst):
    out = []
    for x in lst:
        if isinstance(x, list):
            out.extend(flat(x))
        else:
            out.append(x)
    return out


N_QKV, N_WO, N_GU, N_WD, N_X = 48, 16, 112, 56, 64
PREP_WGS = N_QKV + N_WO + N_GU + N_WD + N_X


def gen_prep():
    p = Prog("prep")
    I = p.I
    end = p.label("end")
    I("s_cmp_ge_u32", "s2", PREP_WGS)
    I("s_cbranch_scc1", end)
    I("s_load_dwordx16", "s[16:31]", "s[0:1]", 0)
    I("s_load_dwordx2", "s[32:33]", "s[0:1]", 72)
    I("v_lshrrev_b32", "v2", 6, "v0")
    I("v_and_b32", "v3", 63, "v0")
    I("v_readfirstlane_b32", "s94", "v2")
    I("v_lshlrev_b32", "v1", 4, "v3")
    I("v_mov_b32", "v5", "0x3f803f80")
    I("s_mov_b32", "s7", "0x20000")
    I("s_mov_b32", "s11", "0x20000")
    I("s_mov_b32", "s15", "0x20000")
    I("s_mov_b32", "s6", WS_BYTES)
    I("s_mov_b32", "s4", "s32")
    I("s_and_b32", "s5", "s33", "0xffff")
    if CODEPF:
        here = p.label("pc")
        I("s_getpc_b64", "s[60:61]")
        p.place(here)
        I("s_add_u32", "s60", "s60", f"main_kernel-{here}")
        I("s_addc_u32", "s61", "s61", 0)
        I("v_lshlrev_b32", "v60", 7, "v0")
        I("s_mov_b32", "s62", "L_main_code_end-main_kernel-4")
        for k in range(CODEPF):
            I("v_min_u32", "v61", "s62", "v60")
            I("global_load_dword", V(56 + k), "v61", "s[60:61]", raw=True)
            I("v_add_u32", "v60", 32768, "v60")
    nz = p.label("nz")
    I("s_cmp_ge_u32", "s2", L.NCNT)
    I("s_cbranch_scc1", nz)
    I("s_cmp_lg_u32", "s94", 0)
    I("s_cbranch_scc1", nz)
    I("v_mov_b32", "v8", 0)
    I("v_lshlrev_b32", "v9", 2, "v3")
    I("s_lshl_b32", "s40", "s2", 8)
    I("s_add_u32", "s40", "s40", L.CNT)
    I("buffer_store_dword", "v8", "v9", "s[4:7]", "s40", mods="offen", raw=True)
    p.place(nz)

    l_wo, l_gu, l_wd, l_x, l_pack = (p.label(n) for n in ("wo", "gu", "wd", "x", "pack"))

    def set_srd(dst, ptr, nbytes):
        I("s_mov_b32", S(dst), S(ptr))
        I("s_and_b32", S(dst + 1), S(ptr + 1), "0xffff")
        I("s_mov_b32", S(dst + 2), nbytes)

    I("s_cmp_ge_u32", "s2", N_QKV)
    I("s_cbranch_scc1", l_wo)
    set_srd(8, 18, 512 * 1536 * 2)
    set_srd(12, 18, 512 * 1536 * 2)
    I("s_mov_b32", "s40", 3072)
    I("s_and_b32", "s45", "s2", 3)
    I("s_and_b32", "s46", "s2", "0xfc")
    I("s_add_u32", "s46", "s46", "s94")
    I("s_mul_i32", "s41", "s45", 128 * 3072)
    I("s_lshl_b32", "s47", "s46", 6)
    I("s_add_u32", "s41", "s41", "s47")
    I("s_add_u32", "s42", "s41", 32)
    I("s_and_b32", "s47", "s46", 15)
    I("s_lshr_b32", "s48", "s46", 4)
    I("s_add_u32", "s48", "s48", 2)
    I("s_cmp_ge_u32", "s48", 3)
    I("s_cselect_b32", "s49", 3, 0)
    I("s_sub_u32", "s48", "s48", "s49")
    I("s_mul_i32", "s47", "s47", 3)
    I("s_add_u32", "s47", "s47", "s48")
    I("s_lshl_b32", "s43", "s47", 15)
    I("s_lshl_b32", "s49", "s45", 13)
    I("s_add_u32", "s43", "s43", "s49")
    I("s_add_u32", "s43", "s43", L.WQKV_P)
    I("s_lshl_b32", "s44", "s47", 10)
    I("s_add_u32", "s44", "s44", L.CSQ)
    I("s_branch", l_pack)

    p.place(l_wo)
    I("s_cmp_ge_u32", "s2", N_QKV + N_WO)
    I("s_cbranch_scc1", l_gu)
    set_srd(8, 20, 512 * 512 * 2)
    set_srd(12, 20, 512 * 512 * 2)
    I("s_mov_b32", "s40", 1024)
    I("s_sub_u32", "s50", "s2", N_QKV)
    I("s_and_b32", "s45", "s50", 3)
    I("s_and_b32", "s46", "s50", "0xfc")
    I("s_add_u32", "s46", "s46", "s94")
    I("s_lshl_b32", "s41", "s45", 17)
    I("s_lshl_b32", "s47", "s46", 6)
    I("s_add_u32", "s41", "s41", "s47")
    I("s_add_u32", "s42", "s41", 32)
    I("s_lshl_b32", "s43", "s46", 15)
    I("s_lshl_b32", "s49", "s45", 13)
    I("s_add_u32", "s43", "s43", "s49")
    I("s_add_u32", "s43", "s43", L.WO_P)
    I("s_mov_b32", "s44", 0)
    I("s_branch", l_pack)

    p.place(l_gu)
    I("s_cmp_ge_u32", "s2", N_QKV + N_WO + N_GU)
    I("s_cbranch_scc1", l_wd)
    set_srd(8, 24, 512 * 1792 * 2)
    set_srd(12, 26, 512 * 1792 * 2)
    I("s_mov_b32", "s40", 3584)
    I("s_sub_u32", "s50", "s2", N_QKV + N_WO)
    I("s_and_b32", "s45", "s50", 3)
    I("s_and_b32", "s46", "s50", "0xfc")
    I("s_add_u32", "s46", "s46", "s94")
    I("s_mul_i32", "s41", "s45", 128 * 3584)
    I("s_lshl_b32", "s47", "s46", 5)
    I("s_add_u32", "s41", "s41", "s47")
    I("s_mov_b32", "s42", "s41")
    I("s_lshl_b32", "s43", "s46", 15)
    I("s_lshl_b32", "s49", "s45", 13)
    I("s_add_u32", "s43", "s43", "s49")
    I("s_add_u32", "s43", "s43", L.WGU_P)
    I("s_lshl_b32", "s44", "s46", 10)
    I("s_add_u32", "s44", "s44", L.CSG)
    I("s_branch", l_pack)

    p.place(l_wd)
    I("s_cmp_ge_u32", "s2", N_QKV + N_WO + N_GU + N_WD)
    I("s_cbranch_scc1", l_x)
    set_srd(8, 28, 1792 * 512 * 2)
    set_srd(12, 28, 1792 * 512 * 2)
    I("s_mov_b32", "s40", 1024)
    I("s_sub_u32", "s50", "s2", N_QKV + N_WO + N_GU)
    I("s_lshr_b32", "s45", "s50", 2)
    I("s_and_b32", "s46", "s50", 3)
    I("s_lshl_b32", "s46", "s46", 2)
    I("s_add_u32", "s46", "s46", "s94")
    I("s_lshl_b32", "s41", "s45", 17)
    I("s_lshl_b32", "s47", "s46", 6)
    I("s_add_u32", "s41", "s41", "s47")
    I("s_add_u32", "s42", "s41", 32)
    I("s_mul_i32", "s43", "s46", 112 * 1024)
    I("s_lshl_b32", "s49", "s45", 13)
    I("s_add_u32", "s43", "s43", "s49")
    I("s_add_u32", "s43", "s43", L.WD_P)
    I("s_mov_b32", "s44", 0)

    p.place(l_pack)
    I("v_lshrrev_b32", "v6", 1, "v3")
    I("v_mul_lo_u32", "v6", "v6", "s40")
    I("v_and_b32", "v7", 1, "v3")
    I("v_lshlrev_b32", "v7", 4, "v7")
    I("v_add_u32", "v6", "v6", "v7")
    I("s_lshl_b32", "s51", "s94", 13)
    I("s_lshl_b32", "s52", "s40", 5)
    for img, (srd, so) in enumerate((("s[8:11]", "s41"), ("s[12:15]", "s42"))):
        for i in range(4):
            I("s_add_u32", "m0", "s51", img * 4096 + i * 1024)
            I("buffer_load_dwordx4", "v6", srd, so, mods="offen lds", tag="dma")
            if i < 3:
                I("s_add_u32", so, so, "s52")
    I("v_lshrrev_b32", "v7", 4, "v3")
    I("v_and_b32", "v7", 1, "v7")
    I("v_lshlrev_b32", "v7", 12, "v7")
    I("v_lshrrev_b32", "v8", 5, "v3")
    I("v_lshlrev_b32", "v8", 7, "v8")
    I("v_add_u32", "v7", "v7", "v8")
    I("v_and_b32", "v8", 15, "v3")
    I("v_lshlrev_b32", "v8", 3, "v8")
    I("v_add_u32", "v7", "v7", "v8")
    I("v_add_u32", "v7", "s51", "v7")
    I("v_mov_b32", "v10", 0)
    I("s_add_u32", "s53", "s43", 4096)
    p.wait_tag("dma")
    for j in range(8):
        I("ds_read_b64_tr_b16", V(16 + 4 * j, 2), "v7", mods=f"offset:{j * 512}")
        I("ds_read_b64_tr_b16", V(18 + 4 * j, 2), "v7", mods=f"offset:{j * 512 + 256}")
    for j in range(8):
        I("buffer_store_dwordx4", V(16 + 4 * j, 4), "v1", "s[4:7]", "s43" if j < 4 else "s53",
          mods=f"offen offset:{(j & 3) * 1024}")
        for q in range(4):
            I("v_dot2_f32_bf16", "v10", V(16 + 4 * j + q), "v5", "v10")
    I("s_cmp_eq_u32", "s44", 0)
    I("s_cbranch_scc1", end)
    I("v_mov_b32", "v11", "v10")
    I("v_permlane32_swap_b32", "v10", "v11")
    I("v_add_f32", "v10", "v10", "v11")
    I("v_cvt_pk_bf16_f32", "v12", "v10", "v10")
    I("v_and_b32", "v11", "0xffff0000", "v12")
    I("v_sub_f32", "v11", "v10", "v11")
    I("v_cvt_pk_bf16_f32", "v13", "v11", "v11")
    I("v_and_b32", "v9", 31, "v3")
    I("v_lshlrev_b32", "v9", 4, "v9")
    I("s_lshr_b32", "s46", "s45", 1)
    I("s_lshl_b32", "s46", "s46", 9)
    I("s_and_b32", "s47", "s45", 1)
    I("s_lshl_b32", "s47", "s47", 3)
    I("s_add_u32", "s44", "s44", "s46")
    I("s_add_u32", "s44", "s44", "s47")
    I("buffer_store_dwordx2", "v[12:13]", "v9", "s[4:7]", "s44", mods="offen")
    I("s_branch", end)

    p.place(l_x)
    p.wait_vm_all()
    p.wait_lgkm_all()
    set_srd(8, 16, 2048 * 512 * 2)
    I("s_sub_u32", "s50", "s2", N_QKV + N_WO + N_GU + N_WD)
    I("v_and_b32", "v6", 31, "v3")
    I("v_lshlrev_b32", "v6", 10, "v6")
    I("v_lshrrev_b32", "v7", 5, "v3")
    I("v_lshlrev_b32", "v7", 4, "v7")
    I("v_add_u32", "v6", "v6", "v7")
    I("s_lshl_b32", "s41", "s50", 15)
    I("s_lshl_b32", "s42", "s94", 8)
    I("s_add_u32", "s42", "s41", "s42")
    for j in range(8):
        I("buffer_load_dwordx4", V(16 + 4 * j, 4), "v6", "s[8:11]", "s42", mods=f"offen offset:{j * 32}")
    I("s_lshl_b32", "s43", "s94", 13)
    I("s_add_u32", "s43", "s43", "s41")
    I("s_add_u32", "s43", "s43", L.X[0])
    I("s_add_u32", "s53", "s43", 4096)
    I("s_lshl_b32", "s44", "s50", 12)
    I("s_lshl_b32", "s45", "s94", 10)
    I("s_add_u32", "s44", "s44", "s45")
    I("s_add_u32", "s44", "s44", L.ST[0])
    I("v_lshlrev_b32", "v9", 2, "v3")
    for jj in range(4):
        s, ss = 48 + 2 * jj, 49 + 2 * jj
        I("v_mov_b32", V(s), 0)
        I("v_mov_b32", V(ss), 0)
        for j in (2 * jj, 2 * jj + 1):
            b = 16 + 4 * j
            for q in range(4):
                I("v_dot2_f32_bf16", V(s), V(b + q), "v5", V(s))
                I("v_dot2_f32_bf16", V(ss), V(b + q), V(b + q), V(ss))
            I("v_permlane32_swap_b32", V(b), V(b + 2))
            I("v_permlane32_swap_b32", V(b + 1), V(b + 3))
            I("buffer_store_dwordx4", V(b, 4), "v1", "s[4:7]", "s43" if j < 4 else "s53",
              mods=f"offen offset:{(j & 3) * 1024}")
        I("v_permlane32_swap_b32", V(s), V(ss))
        I("v_add_f32", V(s), V(s), V(ss))
        I("buffer_store_dword", V(s), "v9", "s[4:7]", "s44", mods=f"offen offset:{jj * 256}")
    p.place(end)
    I("s_endpgm")
    return p


HS = 16384
RED2 = 3 * HS
SCR = 9 * HS
KVPART = SCR
KVFIN = SCR + 9216
RSTD = SCR + 10496
WS = "s[4:7]"
OUT = "s[8:11]"
HB_LOC = [6, 7, 8, 0, 1, 2, 9, 3, 4, 5, 6, 7, 8, 2]
QSPLIT = eval(os.environ.get("QSPLIT", "(8, 10, 24)"))
PF_Q, PF_D, PF_E, PF_F, PF_G, PF_H = eval(os.environ.get("PF", "([0,1,2],[],[3,4],[5,6],[7],[8,9])"))
NA = 5

sG, sC, sW, sW4K = 12, 13, 14, 15
sTB32K, sTBST, sWQKV, sWGU, sCSQ, sCSG, sOTST, sHST = 16, 17, 18, 19, 20, 21, 22, 23
sOT0, sOT1, sWO0, sWO1, sH0, sH1, sWD0, sWD1 = 24, 25, 26, 27, 28, 29, 30, 31
sXIO, sSTO, sKVST, sKVLD, sGC, sCC, sOUT = 32, 33, 34, 35, 36, 37, 38
sDELTA, sLN2 = 39, 40
sT = 44
sM34 = 56
sHM = 58
sLO = 60
sP = 62
sSTMP = 66

vF0, vF1, vF2, vL4 = 1, 2, 3, 4
vKVW, vZW, vKVR = 5, 6, 7
vONES = 8
vRW = 12
vRR = 15
vKFW, vKFR, vRS, vRS2 = 16, 17, 18, 19
vMEAN = 20
vRSW, vRSR, vOUT = 24, 25, 26
vT = 27
vP = 30
vSTAMP = 31
ACC = 32
WB = 96
CS = 132
WDV = 160
WDA = 128
LD4 = "buffer_load_dwordx4"


class Main:
    def __init__(self):
        self.p = Prog("main")
        self.nstamp = 0

    def I(self, *a, **k):
        return self.p.I(*a, **k)

    def stamp(self, name):
        if not STAMPS:
            return
        I = self.I
        self.p.comment(f"stamp {self.nstamp} {name}")
        I("s_memtime", S(sSTMP, 2))
        self.p.wait_lgkm_all()
        I("v_writelane_b32", V(vSTAMP), S(sSTMP), self.nstamp)
        print(f"stamp {self.nstamp}: {name}", file=sys.stderr)
        self.nstamp += 1

    def cap(self, fn, *a):
        self.p.capture()
        fn(*a)
        return self.p.end_capture()

    def frag_ops(self, kind, items, st, sc1, tag=None):
        groups = []
        cur = None
        for reg, sb, off in items:
            g = []
            key = (sb, off & ~4095)
            if key != cur:
                g.append(Inst("s_add_u32", [S(st), S(sb), off & ~4095]))
                cur = key
            m = "offen"
            if off & 4095:
                m += f" offset:{off & 4095}"
            if sc1:
                m += " sc1"
            g.append(Inst(kind, [reg, V(vF0), WS, S(st)], m, tag))
            groups.append(g)
        return groups

    def dma16(self, sb, goff, hslot, tag, st=sT + 5):
        items = []
        for q in range(4):
            g = []
            if q == 0:
                g.append(Inst("s_add_u32", [S(st), S(sb), goff]))
                g.append(Inst("s_add_u32", ["m0", S(sW4K), hslot * HS]))
            m = "offen" + (f" offset:{q * 1024}" if q else "") + " lds"
            g.append(Inst(LD4, [V(vF0), WS, S(st)], m, tag))
            items.append(g)
        return items

    def dma_gu(self, hbs):
        out = []
        for hb in hbs:
            out += self.dma16(sWGU, L.WGU_P + hb * HS, HB_LOC[hb], "wgu")
        return out

    def dma_qkv(self, hs):
        out = []
        for h in hs:
            out += self.dma16(sWQKV, L.WQKV_P + h * HS, h, "wqkv")
        return out

    def lds_frag(self, dst, addr):
        base = (vF0, vF1, vF2)[addr >> 16]
        off = addr & 0xffff
        return Inst("ds_read_b128", [dst, V(base)], f"offset:{off}" if off else "")

    def gu_addr(self, b, kc):
        return HB_LOC[2 * b + (kc >> 4)] * HS + (kc & 15) * 1024

    def emit(self, lst):
        self.p.extend(flat(lst))

    def arrive(self, tag, cnt_base, sgrp):
        I, p = self.I, self.p
        p.wait_tag(tag)
        p.wait_lgkm_all()
        I("s_barrier")
        skip = p.label("arr")
        I("s_cmp_lg_u32", S(sW), 0)
        I("s_cbranch_scc1", skip)
        I("s_add_u32", S(sP), S(sgrp), cnt_base, raw=True)
        I("v_mov_b32", V(vP), 1, raw=True)
        I("s_mov_b64", "exec", 1, raw=True)
        I("buffer_atomic_add", V(vP), "off", WS, S(sP), raw=True)
        I("s_mov_b64", "exec", -1, raw=True)
        p.place(skip)

    def spin(self, done, target=16):
        I, p = self.I, self.p
        loop = p.label("poll")
        I("s_mov_b32", S(sP + 1), 0, raw=True)
        I("s_mov_b64", "exec", 1, raw=True)
        p.place(loop)
        I("buffer_load_dword", V(vP), "off", WS, S(sP), mods="sc1", raw=True)
        I("s_waitcnt", "vmcnt(0)", raw=True)
        I("v_readfirstlane_b32", S(sP + 2), V(vP), raw=True)
        I("s_add_u32", S(sP + 1), S(sP + 1), 1, raw=True)
        I("s_cmp_ge_u32", S(sP + 1), SPIN_MAX, raw=True)
        I("s_cselect_b32", S(sP + 2), target, S(sP + 2), raw=True)
        I("s_cmp_lt_u32", S(sP + 2), target, raw=True)
        I("s_cbranch_scc1", loop, raw=True)
        I("s_mov_b64", "exec", -1, raw=True)

    def poll(self, cnt_base, sgrp):
        I, p = self.I, self.p
        done = p.label("pdone")
        I("s_cmp_lg_u32", S(sW), 0)
        I("s_cbranch_scc1", done)
        I("s_add_u32", S(sP), S(sgrp), cnt_base, raw=True)
        self.spin(done)
        p.place(done)
        I("s_barrier")

    def apoll_issue(self, cnt_base, sgrp):
        return [[Inst("s_add_u32", [S(sP), S(sgrp), cnt_base]),
                 Inst("buffer_load_dword", [V(vP), "off", WS, S(sP)], "sc1")]]

    def apoll_check(self):
        I, p = self.I, self.p
        done = p.label("adone")
        I("v_readfirstlane_b32", S(sP + 2), V(vP))
        I("s_cmp_ge_u32", S(sP + 2), 16)
        I("s_cbranch_scc1", done)
        self.spin(done)
        p.place(done)

    def prologue(self):
        I, p = self.I, self.p
        self.end = p.label("end")
        I("s_cmp_ge_u32", "s2", 256)
        I("s_cbranch_scc1", self.end)
        I("s_load_dwordx2", "s[4:5]", "s[0:1]", 72)
        I("s_load_dwordx2", "s[8:9]", "s[0:1]", 56)
        I("v_lshrrev_b32", V(vT), 6, "v0")
        I("v_and_b32", "v0", 63, "v0")
        I("v_readfirstlane_b32", S(sW), V(vT))
        I("v_lshlrev_b32", V(vF0), 4, "v0")
        if STAMPS:
            I("v_mov_b32", V(vSTAMP), 0)
            self.stamp("entry")
        I("s_and_b32", "s44", "s2", 7)
        I("s_lshr_b32", "s45", "s2", 3)
        if MAP == 0:
            I("s_lshl_b32", S(sG), "s44", 1)
            I("s_lshr_b32", "s46", "s45", 4)
            I("s_add_u32", S(sG), S(sG), "s46")
            I("s_and_b32", S(sC), "s45", 15)
        elif MAP == 1:
            I("s_lshr_b32", S(sG), "s44", 1)
            I("s_lshl_b32", S(sG), S(sG), 2)
            I("s_lshr_b32", "s46", "s45", 3)
            I("s_add_u32", S(sG), S(sG), "s46")
            I("s_and_b32", S(sC), "s44", 1)
            I("s_lshl_b32", S(sC), S(sC), 3)
            I("s_and_b32", "s46", "s45", 7)
            I("s_add_u32", S(sC), S(sC), "s46")
        else:
            I("s_lshr_b32", S(sG), "s44", 2)
            I("s_lshl_b32", S(sG), S(sG), 3)
            I("s_lshr_b32", "s46", "s45", 2)
            I("s_add_u32", S(sG), S(sG), "s46")
            I("s_and_b32", S(sC), "s44", 3)
            I("s_lshl_b32", S(sC), S(sC), 2)
            I("s_and_b32", "s46", "s45", 3)
            I("s_add_u32", S(sC), S(sC), "s46")
        I("s_mov_b32", "s6", WS_BYTES)
        I("s_mov_b32", "s7", "0x20000")
        I("s_lshl_b32", S(sW4K), S(sW), 12)
        I("s_mul_i32", S(sWQKV), S(sC), 3 * 32768)
        I("s_add_u32", S(sWQKV), S(sWQKV), S(sW4K))
        I("s_lshl_b32", "s46", S(sG), 2)
        I("s_add_u32", "s46", "s46", S(sW))
        I("s_lshl_b32", S(sTB32K), "s46", 15)
        I("s_lshl_b32", S(sTBST), "s46", 12)
        I("s_mul_i32", S(sCSQ), S(sC), 3072)
        I("v_lshlrev_b32", V(vL4), 2, "v0")
        I("s_and_b32", "s5", "s5", "0xffff")
        self.p.capture()
        u = 70
        I("s_mov_b32", "s10", 2048 * 512 * 2)
        I("s_mov_b32", "s11", "0x20000")
        I("s_and_b32", "s9", "s9", "0xffff")
        I("v_add_u32", V(vF1), 0x10000, V(vF0))
        I("v_add_u32", V(vF2), 0x20000, V(vF0))
        I("s_mul_i32", S(sWGU), S(sC), 7 * 32768)
        I("s_add_u32", S(sWGU), S(sWGU), S(sW4K))
        I("s_mul_i32", S(sCSG), S(sC), 7168)
        I("s_lshl_b32", S(u + 1), S(sC), 11)
        I("s_add_u32", S(sOTST), S(sTB32K), S(u + 1))
        I("s_lshr_b32", S(u), S(sTB32K), 15)
        I("s_mul_i32", S(sHST), S(u), 112 * 1024)
        I("s_add_u32", S(sHST), S(sHST), S(sCSG))
        I("s_lshl_b32", S(u), S(sG), 2)
        I("s_lshr_b32", S(u + 1), S(sC), 3)
        I("s_lshl_b32", S(u + 1), S(u + 1), 1)
        I("s_add_u32", S(u), S(u), S(u + 1))
        I("s_lshr_b32", S(u + 1), S(sW), 1)
        I("s_add_u32", S(u), S(u), S(u + 1))
        I("s_xor_b32", S(u + 1), S(u), 1)
        I("s_and_b32", S(u + 2), S(sC), 7)
        I("s_lshl_b32", S(u + 2), S(u + 2), 1)
        I("s_and_b32", S(u + 3), S(sW), 1)
        I("s_add_u32", S(u + 2), S(u + 2), S(u + 3))
        I("s_xor_b32", S(u + 3), S(u + 2), 1)
        I("s_mul_i32", S(u + 4), S(sW), 28 * 1024)
        I("s_lshl_b32", S(u + 5), S(sW), 13)
        for dst, src in ((sOT0, u), (sOT1, u + 1), (sWO0, u + 2), (sWO1, u + 3)):
            I("s_lshl_b32", S(dst), S(src), 15)
            I("s_add_u32", S(dst), S(dst), S(u + 5))
        for dst, src in ((sH0, u), (sH1, u + 1), (sWD0, u + 2), (sWD1, u + 3)):
            I("s_mul_i32", S(dst), S(src), 112 * 1024)
            I("s_add_u32", S(dst), S(dst), S(u + 4))
        I("s_lshl_b32", S(sXIO), S(u), 15)
        I("s_lshl_b32", S(u + 5), S(u + 2), 11)
        I("s_add_u32", S(sXIO), S(sXIO), S(u + 5))
        I("s_lshl_b32", S(sSTO), S(u), 12)
        I("s_lshl_b32", S(u + 5), S(u + 2), 8)
        I("s_add_u32", S(sSTO), S(sSTO), S(u + 5))
        I("s_lshl_b32", S(sOUT), S(u), 15)
        I("s_lshl_b32", S(u + 5), S(u + 2), 6)
        I("s_add_u32", S(sOUT), S(sOUT), S(u + 5))
        I("s_mul_i32", S(u + 5), S(sW), 544)
        I("s_mul_i32", S(sKVLD), S(sC), 16 * L.KVS)
        I("s_add_u32", S(sKVLD), S(sKVLD), S(u + 5))
        I("s_mul_i32", S(sKVST), S(sG), L.KVS)
        I("s_add_u32", S(sKVST), S(sKVST), S(sKVLD))
        I("s_lshl_b32", S(sGC), S(sG), 8)
        I("s_lshl_b32", S(sCC), S(sC), 8)
        I("s_mov_b32", S(sDELTA), DELTA)
        I("s_mov_b32", S(sLN2), LN2)
        I("s_mov_b32", S(sM34), -1)
        I("s_mov_b32", S(sM34 + 1), 3)
        I("s_mov_b32", S(sHM), "0xffff0000")
        I("s_mov_b32", S(sHM + 1), "0xffff0000")
        I("s_mov_b32", S(sLO), -1)
        I("s_mov_b32", S(sLO + 1), 0)
        for q in range(4):
            I("v_mov_b32", V(vONES + q), "0x3f803f80")
        t0, t1 = vT, vT + 1
        x = S(u + 6)
        I("s_mul_i32", x, S(sW), 2304)
        I("s_add_u32", x, x, KVPART)
        I("v_bfe_u32", V(t0), "v0", 4, 1)
        I("v_mul_u32_u24", V(t0), 1088, V(t0))
        I("v_lshrrev_b32", V(t1), 5, "v0")
        I("v_lshl_add_u32", V(t0), V(t1), 5, V(t0))
        I("v_add_u32", V(t0), x, V(t0))
        I("v_add_u32", V(vZW), 1024, V(t0))
        I("v_and_b32", V(t1), 15, "v0")
        I("v_lshl_add_u32", V(vKVW), V(t1), 6, V(t0))
        I("s_add_u32", x, S(u + 5), KVPART)
        I("v_add_u32", V(vKVR), x, V(vF0))
        I("s_mul_i32", x, S(sW), 272)
        I("s_add_u32", x, x, KVFIN)
        I("v_lshlrev_b32", V(t0), 3, "v0")
        I("v_add_u32", V(vKFW), x, V(t0))
        I("v_and_b32", V(t0), 31, "v0")
        I("v_min_u32", V(t0), 16, V(t0))
        I("v_lshlrev_b32", V(t0), 5, V(t0))
        I("v_lshrrev_b32", V(t1), 5, "v0")
        I("v_lshl_add_u32", V(t0), V(t1), 4, V(t0))
        I("v_add_u32", V(vKFR), KVFIN, V(t0))
        I("s_lshl_b32", x, S(sW), 8)
        I("s_add_u32", x, x, RSTD)
        I("v_add_u32", V(vRSW), x, V(vL4))
        I("v_lshlrev_b32", V(t1), 4, V(t1))
        I("v_add_u32", V(vRSR), x, V(t1))
        for k in (1, 2, 3):
            I("s_xor_b32", x, S(sW), k)
            I("s_mul_i32", x, x, 12288)
            I("s_add_u32", x, x, RED2 + (k - 1) * 4096)
            I("v_add_u32", V(vRW + k - 1), x, V(vF0))
        I("s_mul_i32", x, S(sW), 12288)
        I("s_add_u32", x, x, RED2)
        I("v_add_u32", V(vRR), x, V(vF0))
        I("v_and_b32", V(t0), 31, "v0")
        I("v_lshlrev_b32", V(t0), 10, V(t0))
        I("v_add_u32", V(vOUT), V(t0), V(t1))
        self.setup_rest = self.p.end_capture()

    def stat_loads(self, xi):
        g = []
        for j in range(16):
            it = [Inst("s_add_u32", [S(sT + 1), S(sTBST), L.ST[xi]])] if j == 0 else []
            it.append(Inst("buffer_load_dword", [V(80 + j), V(vL4), WS, S(sT + 1)],
                           "offen" + (f" offset:{j * 256}" if j else "") + " sc1"))
            g.append(it)
        return g

    def act_loads(self, xi):
        return self.frag_ops(LD4, [(A(4 * kc, 4), sTB32K, L.X[xi] + kc * 1024) for kc in range(32)], sT, True)

    def stats_calc(self, second):
        I = self.I
        for st in (8, 4, 2, 1):
            for j in range(st):
                I("v_add_f32", V(80 + j), V(80 + j), V(80 + j + st))
        I("v_mov_b32", "v81", "v80")
        I("v_permlane32_swap_b32", "v80", "v81")
        I("v_mul_f32", "v80", f"0x{INV512 | 0x80000000:08x}", "v80")
        I("v_mul_f32", "v81", f"0x{INV512:08x}", "v81")
        I("v_fma_f32", "v81", "-v80", "v80", "v81")
        I("v_max_f32", "v81", 0, "v81")
        I("v_add_f32", "v81", f"0x{EPS5:08x}", "v81")
        I("v_rsq_f32", V(vRS), "v81")
        I("v_cvt_pk_bf16_f32", "v82", "v80", "v80")
        I("v_and_b32", "v82", "0xffff0000", "v82")
        I("v_sub_f32", "v82", "v80", "v82")
        I("v_cvt_pk_bf16_f32", V(vMEAN), "v80", "v82")
        if second == "log2e":
            I("v_mul_f32", V(vRS2), f"0x{LOG2E:08x}", V(vRS))
        else:
            I("v_mul_f32", V(vRS2), V(vRS), V(vRS))
        for q in (1, 2, 3):
            I("v_mov_b32", V(vMEAN + q), V(vMEAN))

    def phi(self, dst_pk, src, scale):
        I = self.I
        I("v_fma_f32", V(src), V(src), scale(0), S(sDELTA))
        for r in range(16):
            t = vT + (r & 1)
            I("v_exp_f32", V(t), V(src + r), mods="clamp")
            I("v_max_f32", V(src + r), S(sDELTA), V(src + r))
            if r + 1 < 16:
                I("v_fma_f32", V(src + r + 1), V(src + r + 1), scale(r + 1), S(sDELTA))
            I("v_fma_f32", V(src + r), V(src + r), S(sLN2), V(t))
            if r & 1:
                I("v_cvt_pk_bf16_f32", V(dst_pk + (r >> 1)), V(src + r - 1), V(src + r))

    def nblock(self, acc, addr_of, act_first, cs, ring, nring, pre=5):
        wr = lambda kc: V(ring + (kc % nring) * 4, 4)
        rd = lambda kc: self.lds_frag(wr(kc), addr_of(kc))
        m = [rd(k) for k in range(pre)]
        for kc in range(32):
            if kc + pre < 32:
                m.append(rd(kc + pre))
            m.append(Inst(MFMA, [V(acc, 16), wr(kc), A(4 * kc, 4), 0 if kc == 0 else V(acc, 16)]))
        m.append(Inst(MFMA, [V(acc, 16), V(cs, 4), V(vMEAN, 4), V(acc, 16)]))
        return m

    def phase1(self, ly):
        I, p = self.I, self.p
        xi = 2 * ly
        acts = self.act_loads(xi)
        stl = self.stat_loads(xi)
        csl = self.frag_ops(LD4, [(V(CS + 4 * t, 4), sCSQ, L.CSQ + t * 1024) for t in range(3)], sT + 2, False)
        PRE = 8
        if ly == 0:
            self.emit(self.dma_qkv([0, 2]))
            self.emit(acts[:PRE])
            self.emit(self.setup_rest)
            self.emit(self.dma16(sWQKV, L.WQKV_P + 1 * HS, 1, "wqkv2") + self.dma16(sWQKV, L.WQKV_P + 3 * HS, 3, "wqkv2"))
            p.wait_tag("wqkv")
            I("s_barrier")
        else:
            p.wait_tag("wqkv")
            self.poll(L.cnt_off(ly - 1, L.EV_X2), sGC)
            self.emit(acts[:PRE])
        self.stamp("p1 start")
        aK, aV, aQ = ACC, ACC + 16, ACC + 32
        NST = 4

        def wb(kc, t):
            return V(WB + ((kc % NST) * 2 + t) * 4, 4)

        def reads(kc):
            return [self.lds_frag(wb(kc, t), t * 2 * HS + kc * 1024) for t in range(2)]

        main = reads(0) + reads(1) + reads(2)
        for kc in range(32):
            if kc + 3 < 32:
                if ly == 0 and kc + 3 == 16:
                    main += [("wait_tag", "wqkv2"), Inst("s_barrier")]
                main += reads(kc + 3)
            act = A(4 * kc, 4)
            c = lambda a: (0 if kc == 0 else V(a, 16))
            main.append(Inst(MFMA, [V(aK, 16), act, wb(kc, 0), c(aK)]))
            main.append(Inst(MFMA, [V(aV, 16), act, wb(kc, 1), c(aV)]))
        RL, RV = 144, 80

        def rsvec():
            self.stats_calc("log2e")
            I("v_cndmask_b32", V(vT), V(vRS), V(vRS2), S(sLO, 2))
            I("ds_write_b32", V(vRSW), V(vT))
            for a in range(4):
                I("ds_read_b128", V(RL + 4 * a, 4), V(vRSR), mods=f"offset:{a * 32}")
            for a in range(4):
                I("ds_read_b128", V(RV + 4 * a, 4), V(vRSR), mods=f"offset:{128 + a * 32}")

        late = csl + (self.dma16(sWQKV, L.WQKV_P + 4 * HS, 4, "wqkv3") + self.dma16(sWQKV, L.WQKV_P + 5 * HS, 5, "wqkv3")
                      if ly == 0 else [])
        self.emit(weave(main, (acts[PRE:], 0, 48), (stl, 0, 16), (self.cap(rsvec), 36, 62), (late, 48, 60)))
        I(MFMA, V(aK, 16), V(vMEAN, 4), V(CS, 4), V(aK, 16))
        I(MFMA, V(aV, 16), V(vMEAN, 4), V(CS + 4, 4), V(aV, 16))
        if ly == 0:
            p.wait_tag("wqkv3")
            I("s_barrier")
        self.stamp("p1 kv mfma done")
        PK, VV = 120, 132
        D, DZ = aK, aV

        def kv_epi1():
            self.phi(PK, aK, lambda r: V(RL + r))
            for r in range(16):
                I("v_mul_f32", V(aV + r), V(aV + r), V(RV + r))
                if r & 1:
                    I("v_cvt_pk_bf16_f32", V(VV + (r >> 1)), V(aV + r - 1), V(aV + r))

        def kv_epi2():
            for j in range(8):
                I("v_cndmask_b32", V(D + j), V(D + j), V(D + 8 + j), S(sHM, 2))
            I("ds_write_b128", V(vKVW), V(D, 4))
            I("ds_write_b128", V(vKVW), V(D + 4, 4), mods="offset:16")
            for j in range(8):
                I("v_cndmask_b32", V(DZ + j), V(DZ + j), V(DZ + 8 + j), S(sHM, 2))
            I("ds_write_b128", V(vZW), V(DZ, 4))
            I("ds_write_b128", V(vZW), V(DZ + 4, 4), mods="offset:16")

        qb = self.nblock(aQ, lambda kc: 4 * HS + kc * 1024, False, CS + 8, WB, 6, pre=4)
        mf = [n for n, i in enumerate(qb) if i.cls == "mfma"]
        Q1, Q2, Q3 = QSPLIT
        part1, part2, part3, part4 = qb[:mf[Q1]], qb[mf[Q1]:mf[Q2]], qb[mf[Q2]:mf[Q3]], qb[mf[Q3]:]
        self.emit(weave(part1, (self.cap(kv_epi1), 0, Q1)) if Q1 else part1 + self.cap(kv_epi1))
        I(MFMA, V(D, 16), V(PK, 4), V(VV, 4), 0)
        I(MFMA, V(D, 16), V(PK + 4, 4), V(VV + 4, 4), V(D, 16))
        I(MFMA, V(DZ, 16), V(PK, 4), V(vONES, 4), 0)
        I(MFMA, V(DZ, 16), V(PK + 4, 4), V(vONES, 4), V(DZ, 16))
        self.emit(weave(part2, (self.cap(kv_epi2), 0, Q2 - Q1)))
        p.wait_lgkm_all()
        I("s_barrier")

        def kv_epi3():
            for s in range(4):
                I("ds_read_b128", V(D + 4 * s, 4), V(vKVR), mods=f"offset:{s * 2304}" if s else "")
            for q in (0, 2):
                I("v_pk_add_f32", V(D + q, 2), V(D + q, 2), V(D + 4 + q, 2))
                I("v_pk_add_f32", V(D + 8 + q, 2), V(D + 8 + q, 2), V(D + 12 + q, 2))
            for q in (0, 2):
                I("v_pk_add_f32", V(D + q, 2), V(D + q, 2), V(D + 8 + q, 2))

        e3 = self.cap(kv_epi3)
        st = [[Inst("s_add_u32", [S(sT), S(sKVST), L.KVP[ly]]),
               Inst("s_mov_b64", ["exec", S(sM34, 2)]),
               Inst("buffer_store_dwordx4", [V(D, 4), V(vF0), WS, S(sT)], "offen sc1", "kvst"),
               Inst("s_mov_b64", ["exec", -1])]]
        self.emit(e3[:4])
        self.emit(weave(part3, (e3[4:] + st, 1, 2), (self.dma_gu(PF_Q), 3, Q3 - Q2)))
        self.arrive("kvst", L.cnt_off(ly, L.EV_KV), sCC)
        self.stamp("p1 kv published")
        wo = self.frag_ops(LD4, [(A(4 * (n * 8 + k), 4), (sWO0, sWO1)[n], L.WO_P + k * 1024)
                                 for n in range(2) for k in range(8)], sT, False)
        self.emit(weave(part4, (wo[:8], 0, 33 - Q3)))
        PQ = 120
        ph = self.cap(self.phi, PQ, aQ, lambda r: V(vRS2))
        rest = wo[8:] + self.resid_load(2 * ly)
        k = len(ph) // len(rest)
        for n, it in enumerate(rest):
            self.emit([it] + ph[n * k:(n + 1) * k])
        self.emit(ph[len(rest) * k:])
        self.stamp("p1 q done")
        self.poll(L.cnt_off(ly, L.EV_KV), sCC)
        self.stamp("p1 kv ready")
        G = ACC
        I("s_mov_b64", "exec", S(sM34, 2))
        for gi in range(16):
            I("s_add_u32", S(sT), S(sKVLD), L.KVP[ly] + gi * L.KVS)
            I(LD4, V(G + 4 * gi, 4), V(vF0), WS, S(sT), mods="offen sc1")
        I("s_mov_b64", "exec", -1)
        self.emit(self.dma_gu(PF_D))
        for gi in range(1, 16, 2):
            for q in (0, 2):
                I("v_pk_add_f32", V(G + 4 * (gi - 1) + q, 2), V(G + 4 * (gi - 1) + q, 2), V(G + 4 * gi + q, 2))
            if gi > 1:
                for q in (0, 2):
                    I("v_pk_add_f32", V(G + q, 2), V(G + q, 2), V(G + 4 * (gi - 1) + q, 2))
        I("v_cvt_pk_bf16_f32", V(G), V(G), V(G + 1))
        I("v_cvt_pk_bf16_f32", V(G + 1), V(G + 2), V(G + 3))
        I("s_mov_b64", "exec", S(sM34, 2))
        I("ds_write_b64", V(vKFW), V(G, 2))
        I("s_mov_b64", "exec", -1)
        p.wait_lgkm_all()
        I("s_barrier")
        KF = WB
        I("ds_read_b128", V(KF, 4), V(vKFR))
        I("ds_read_b128", V(KF + 4, 4), V(vKFR), mods="offset:544")
        d0, d1 = ACC + 16, ACC + 32
        I(MFMA, V(d0, 16), V(KF, 4), V(PQ, 4), 0)
        I(MFMA, V(d1, 16), V(KF + 4, 4), V(PQ + 4, 4), 0)
        I("s_add_u32", S(sT), S(sOTST), L.OT[ly])
        for hh, d in enumerate((d0, d1)):
            I("v_add_f32", V(vT), f"0x{EPS6:08x}", V(d + 8))
            I("v_rcp_f32", V(vT), V(vT))
            for j in range(8):
                I("v_mul_f32", V(d + j), V(d + j), V(vT))
                if j & 1:
                    I("v_cvt_pk_bf16_f32", V(d + 8 + (j >> 1)), V(d + j - 1), V(d + j))
            I("buffer_store_dwordx4", V(d + 8, 4), V(vF0), WS, S(sT),
              mods="offen" + (" offset:1024" if hh else "") + " sc1", tag="otst")
        self.resid_unpack()
        self.arrive("otst", L.cnt_off(ly, L.EV_OT), sGC)
        self.stamp("p1 ot published")
        self.emit(self.dma_gu(PF_E))

    RES = 136

    def resid_load(self, xi):
        return self.frag_ops(LD4, [(V(self.RES + 4 * k, 4), sXIO, L.X[xi] + k * 1024) for k in range(2)], sT + 2, True)

    def resid_unpack(self):
        I = self.I
        for r in range(16):
            src = self.RES + (r >> 1)
            if r & 1:
                I("v_and_b32", V(ACC + r), "0xffff0000", V(src))
            else:
                I("v_lshlrev_b32", V(ACC + r), 16, V(src))

    def red_writes(self, u, roff):
        return [Inst("ds_write_b128", [V(vRW + u - 1), V(ACC + 16 * u + 4 * q, 4)], f"offset:{roff + q * 1024}")
                for q in range(4)]

    def tile_epilogue(self, xo, final, tag, roff):
        I, p = self.I, self.p
        p.wait_lgkm_all()
        I("s_barrier")
        for s in range(3):
            for q in range(4):
                I("ds_read_b128", V(ACC + 16 + 16 * s + 4 * q, 4), V(vRR), mods=f"offset:{roff + s * 4096 + q * 1024}")
        for s in range(3):
            for r in range(0, 16, 2):
                I("v_pk_add_f32", V(ACC + r, 2), V(ACC + r, 2), V(ACC + 16 + 16 * s + r, 2))
        O = ACC + 16
        for j in range(8):
            I("v_cvt_pk_bf16_f32", V(O + j), V(ACC + 2 * j), V(ACC + 2 * j + 1))
        if final:
            for k in range(2):
                I("v_permlane32_swap_b32", V(O + 4 * k), V(O + 4 * k + 2))
                I("v_permlane32_swap_b32", V(O + 4 * k + 1), V(O + 4 * k + 3))
                I("buffer_store_dwordx4", V(O + 4 * k, 4), V(vOUT), OUT, S(sOUT),
                  mods="offen" + (" offset:32" if k else ""))
            return
        I("s_add_u32", S(sT), S(sXIO), L.X[xo])
        I("buffer_store_dwordx4", V(O, 4), V(vF0), WS, S(sT), mods="offen sc1", tag=tag)
        I("buffer_store_dwordx4", V(O + 4, 4), V(vF0), WS, S(sT), mods="offen offset:1024 sc1", tag=tag)
        s1, s2 = vT, vT + 1
        for j in range(8):
            I("v_dot2_f32_bf16", V(s1), V(O + j), V(vONES), 0 if j == 0 else V(s1))
            I("v_dot2_f32_bf16", V(s2), V(O + j), V(O + j), 0 if j == 0 else V(s2))
        I("v_permlane32_swap_b32", V(s1), V(s2))
        I("v_add_f32", V(s1), V(s1), V(s2))
        I("s_add_u32", S(sT + 1), S(sSTO), L.ST[xo])
        I("buffer_store_dword", V(s1), V(vL4), WS, S(sT + 1), mods="offen sc1", tag=tag)

    def mm(self, u, w, x, first):
        c = V(ACC + 16 * u, 16) if (u == 0 or not first) else 0
        return Inst(MFMA, [V(ACC + 16 * u, 16), w[u & 1], x[u >> 1], c])

    def tile_mfmas(self, steps, roff, tail=2):
        out = []
        n = len(steps)
        for k, (w, x) in enumerate(steps[: n - tail]):
            for u in (0, 1, 2, 3):
                out.append(self.mm(u, w, x, k == 0))
        for u in (3, 2, 1):
            for k in range(n - tail, n):
                out.append(self.mm(u, steps[k][0], steps[k][1], k == 0))
        own = [self.mm(0, steps[k][0], steps[k][1], k == 0) for k in range(n - tail, n)]
        return out, own

    def phase2(self, ly):
        I, p = self.I, self.p
        self.poll(L.cnt_off(ly, L.EV_OT), sGC)
        self.stamp("p2 ot ready")
        o0 = self.frag_ops(LD4, [(A(64 + 8 * k, 4), sOT0, L.OT[ly] + k * 1024) for k in range(8)], sT, True)
        o1 = self.frag_ops(LD4, [(A(64 + 8 * k + 4, 4), sOT1, L.OT[ly] + k * 1024) for k in range(8)], sT + 1, True)
        loads = [x for k in range(8) for x in (o0[k], o1[k])]
        steps = [((A(4 * k, 4), A(32 + 4 * k, 4)), (A(64 + 8 * k, 4), A(64 + 8 * k + 4, 4))) for k in range(8)]
        mm, own = self.tile_mfmas(steps, 0)
        self.emit(loads[:10])
        self.emit(weave(mm, (loads[10:], 0, 10), (self.dma_gu(PF_F), 12, 24)))
        self.emit(self.red_writes(3, 0) + [own[0]] + self.red_writes(2, 0) + [own[1]] + self.red_writes(1, 0))
        self.stamp("p2 mfma done")
        self.tile_epilogue(2 * ly + 1, False, "x1st", 0)
        self.arrive("x1st", L.cnt_off(ly, L.EV_X1), sGC)
        self.stamp("p2 x1 published")
        self.emit(self.frag_ops(LD4, [(V(CS + 4 * b, 4), sCSG, L.CSG + b * 1024) for b in range(7)], sT + 1, False))
        self.emit(self.dma_gu(PF_G))

    def wd_reg(self, idx):
        return A(WDA + 4 * idx, 4) if idx < 32 else V(WDV + 4 * (idx - 32), 4)

    def p4_order(self):
        a = [7 * cc + b for cc in range(4) for b in range(NA)]
        bb = [7 * cc + b for cc in range(4) for b in range(NA, 7)]
        return a + bb

    def hreg(self, n, t):
        return A(8 * (n % 16) + 4 * t, 4)

    def hload(self, ly, n):
        ch = self.p4_order()[n]
        return (self.frag_ops(LD4, [(self.hreg(n, 0), sH0, L.H[ly] + ch * 1024)], sT, True)
                + self.frag_ops(LD4, [(self.hreg(n, 1), sH1, L.H[ly] + ch * 1024)], sT + 1, True))

    def phase3(self, ly):
        I, p = self.I, self.p
        xi = 2 * ly + 1
        p.wait_tag("wgu")
        self.poll(L.cnt_off(ly, L.EV_X1), sGC)
        self.stamp("p3 x1 ready")
        acts = self.act_loads(xi)
        stl = self.stat_loads(xi)
        PRE = 8
        self.emit(acts[:PRE])
        NST = 3

        def wb(kc, t):
            return V(WB + ((kc % NST) * 3 + t) * 4, 4)

        def reads(kc):
            return [self.lds_frag(wb(kc, t), self.gu_addr(t, kc)) for t in range(3)]

        accs = [ACC, ACC + 16, ACC + 32, ACC + 48, ACC, ACC + 16, ACC + 32]
        main = reads(0) + reads(1)
        for kc in range(32):
            if kc + 2 < 32:
                main += reads(kc + 2)
            for t in range(3):
                main.append(Inst(MFMA, [V(accs[t], 16), wb(kc, t), A(4 * kc, 4), 0 if kc == 0 else V(accs[t], 16)]))
        wd = []
        if ly == 0:
            for n, ch in enumerate(self.p4_order()):
                wd += self.frag_ops(LD4, [(self.wd_reg(2 * n), sWD0, L.WD_P + ch * 1024)], sT + 3, False)
                wd += self.frag_ops(LD4, [(self.wd_reg(2 * n + 1), sWD1, L.WD_P + ch * 1024)], sT + 4, False)
        self.emit(weave(main, (acts[PRE:], 0, 48), (stl, 0, 16), (self.cap(self.stats_calc, "sq"), 40, 80),
                        (self.dma_gu(PF_H), 50, 50 + 8 * len(PF_H)), (wd[0:16], 50 + 8 * len(PF_H), 96)))
        for t in range(3):
            I(MFMA, V(accs[t], 16), V(CS + 4 * t, 4), V(vMEAN, 4), V(accs[t], 16))
        self.stamp("p3 kouter done")
        p.wait_tag("wgu")
        I("s_barrier")

        def epi(b):
            tag = "hA" if b < NA else "hB"
            p.capture()
            a = accs[b]
            for j in range(8):
                I("v_mul_f32", V(a + j), V(a + j), V(vRS2))
                I("v_mul_f32", V(a + j), V(a + j), V(a + 8 + j))
                if j & 1:
                    I("v_cvt_pk_bf16_f32", V(a + 8 + (j >> 1)), V(a + j - 1), V(a + j))
            lst = p.end_capture()
            lst += self.frag_ops("buffer_store_dwordx4", [(V(a + 8, 4), sHST, L.H[ly] + b * 1024)], sT + 2, True, tag)
            return lst

        def block(b):
            return self.nblock(accs[b], lambda kc: self.gu_addr(b, kc), False, CS + 4 * b, WB, 9, pre=6)

        self.emit(weave(block(3), (epi(0) + epi(1) + epi(2), 1, 30), (self.dma_gu([10, 11, 12, 13]), 0, 32)))
        self.emit(weave(block(4), (epi(3), 1, 10), (wd[16:32], 0, 33)))
        p.wait_tag("wgu")
        p.wait_lgkm_all()
        I("s_barrier")
        self.emit(weave(block(5), (epi(4), 1, 8), (wd[32:44], 8, 33)))
        self.arrive("hA", L.cnt_off(ly, L.EV_HA), sGC)
        self.emit(weave(block(6), (epi(5), 1, 8), (wd[44:56], 2, 24), (self.resid_load(xi), 24, 26),
                        (self.apoll_issue(L.cnt_off(ly, L.EV_HA), sGC), 26, 27)))
        self.stamp("p3 mfma done")
        self.emit(epi(6))
        self.apoll_check()
        self.stamp("p4 hA ready")

    def phase4(self, ly):
        I, p = self.I, self.p
        final = ly == 1
        LA = 5
        for n in range(LA):
            self.emit(self.hload(ly, n))
        self.resid_unpack()
        self.arrive("hB", L.cnt_off(ly, L.EV_HB), sGC)
        self.stamp("p3 h published")
        steps = [((self.wd_reg(2 * n), self.wd_reg(2 * n + 1)), (self.hreg(n, 0), self.hreg(n, 1))) for n in range(28)]
        mm, own = self.tile_mfmas(steps, 49152)
        nA = 4 * NA
        cut = 4 * (nA - LA)
        la = [x for n in range(LA, nA) for x in self.hload(ly, n)]
        lb = [x for n in range(nA, 28) for x in self.hload(ly, n)]
        self.emit(weave(mm[:cut], (la, 0, cut), (self.apoll_issue(L.cnt_off(ly, L.EV_HB), sGC), cut - 24, cut - 23)))
        self.apoll_check()
        self.stamp("p4 hB ready")
        nxt = [] if final else self.dma_qkv([0, 2, 1])
        self.emit(weave(mm[cut:], (lb, 0, 4 * (28 - nA)), (nxt, 4 * (28 - nA), 4 * (28 - nA) + 18)))
        R4 = 49152
        self.emit(self.red_writes(3, R4) + [own[0]] + self.red_writes(2, R4) + [own[1]] + self.red_writes(1, R4))
        self.stamp("p4 mfma done")
        self.tile_epilogue(2 * ly + 2, final, "x2st", R4)
        if not final:
            self.arrive("x2st", L.cnt_off(ly, L.EV_X2), sGC)
            self.emit(self.dma_qkv([3, 4, 5]))
        self.stamp("p4 done")

    def build(self):
        I, p = self.I, self.p
        self.prologue()
        ph = 0
        for ly in range(2):
            for f in (self.phase1, self.phase2, self.phase3, self.phase4):
                if ph <= STOP:
                    f(ly)
                ph += 1
        if STAMPS:
            I("s_lshl_b32", S(sT), "s2", 2)
            I("s_add_u32", S(sT), S(sT), S(sW))
            I("s_lshl_b32", S(sT), S(sT), 8)
            I("s_add_u32", S(sT), S(sT), L.STAMP)
            I("buffer_store_dword", V(vSTAMP), V(vL4), WS, S(sT), mods="offen")
        p.place(self.end)
        I("s_endpgm")
        return p


HEADER = open(os.path.join(os.path.dirname(os.path.abspath(__file__)), "header.txt")).read()


def kd(name, nv, acc, ns=102):
    return f""".p2align 6
.amdhsa_kernel {name}
  .amdhsa_next_free_vgpr {nv}
  .amdhsa_next_free_sgpr {ns}
  .amdhsa_accum_offset {acc}
  .amdhsa_group_segment_fixed_size 0
  .amdhsa_kernarg_size 80
  .amdhsa_user_sgpr_count 2
  .amdhsa_user_sgpr_kernarg_segment_ptr 1
  .amdhsa_system_sgpr_workgroup_id_x 1
.end_amdhsa_kernel
"""


def main():
    prep = gen_prep()
    mn = Main().build()
    out = HEADER
    out += f"; @launch kernel=prep_kernel grid=({PREP_WGS},1,1) block=(256,1,1) lds=32768\n"
    out += "; @launch kernel=main_kernel grid=(256,1,1) block=(256,1,1) lds=163840\n"
    out += '.amdgcn_target "amdgcn-amd-amdhsa--gfx950"\n.text\n'
    for name, p in (("prep_kernel", prep), ("main_kernel", mn)):
        out += f".globl {name}\n.p2align 8\n.type {name},@function\n{name}:\n"
        out += p.finalize() + "\n"
    out += "L_main_code_end:\n"
    out += '.section .rodata,"a"\n'
    out += kd("prep_kernel", 64, 64)
    out += kd("main_kernel", 512, 256)
    sys.stdout.write(out)


if __name__ == "__main__":
    main()
```
